```python
import torch

def _softmax(x, axis=-1):
    return torch.softmax(x, dim=axis)
def _gelu(x):
    return torch.nn.functional.gelu(x, approximate="tanh")
def _silu(x):
    return torch.nn.functional.silu(x)
def _sigmoid(x):
    return torch.sigmoid(x)
def _layernorm(x, axis=-1, eps=1e-5):
    m = x.mean(dim=axis, keepdim=True)
    v = x.var(dim=axis, keepdim=True, unbiased=False)
    return (x - m) / torch.sqrt(v + eps)
def _scatter_add(tgt, idx, src, axis=0):
    return tgt.clone().index_add_(axis, idx, src)
def _segment_sum(src, seg, n):
    out = torch.zeros((n,) + src.shape[1:], dtype=src.dtype)
    return out.index_add_(0, seg, src)
def _pad(x, pw):
    flat = tuple(v for pair in reversed(pw) for v in pair)
    return torch.nn.functional.pad(x, flat)

kernel_name = 'concat_heads__linear_attn_block__sliding_local_dilated__prompt'

def setup_inputs():

    _w = (lambda a: (lambda t: t.to(torch.bfloat16) if t.is_floating_point() else t)(torch.as_tensor(a)))
    def _A_setup():
        B, S, D = 1, 2048, 512
        return {
            "x": _w((lambda *s: torch.randn(*s, dtype=torch.bfloat16) * 0.05)(B, S, D)),
            "wqkv": _w((lambda *s: torch.randn(*s, dtype=torch.bfloat16) * 1.6)(D, 3 * D)),
            "wo": _w((lambda *s: torch.randn(*s, dtype=torch.bfloat16) * 0.8)(D, D)),
        }
    _A_in = _A_setup()

    def _B_setup():
        B, S, D = 1, 2048, 512
        return {
            "x": _w((lambda *s: torch.randn(*s, dtype=torch.bfloat16) * 0.2)(B, S, D)),
            "wqkv": _w((lambda *s: torch.randn(*s, dtype=torch.bfloat16) * 0.2)(D, 3 * D)),
            "wo": _w((lambda *s: torch.randn(*s, dtype=torch.bfloat16) * 0.05)(D, D)),
        }
    _B_in = _B_setup()

    return {
        "A_x": _A_in["x"],
        "A_wqkv": _A_in["wqkv"],
        "A_wo": _A_in["wo"],
        "B_x": _B_in["x"],
        "B_wqkv": _B_in["wqkv"],
        "B_wo": _B_in["wo"],
    }

def reference(A_x, A_wqkv, A_wo, B_x, B_wqkv, B_wo):
    def _A_ref(x, wqkv, wo):
        B, S, D = x.shape
        H = 32; Dh = D // H
        qkv = (lambda x, *d: x.permute(*d))((x @ wqkv).reshape(B, S, 3, H, Dh), 2, 0, 3, 1, 4)
        q, k, v = qkv[0], qkv[1], qkv[2]
        phi = lambda t: torch.where(t > 0, t + 1, torch.exp(t)) + 1e-6
        pq, pk = phi(q), phi(k)
        kv = torch.einsum("bhsd,bhse->bhde", pk, v)
        z = torch.einsum("bhsd->bhd", pk)
        num = torch.einsum("bhqd,bhde->bhqe", pq, kv)
        den = torch.einsum("bhqd,bhd->bhq", pq, z)[..., None] + 1e-6
        o = num / den
        return (lambda x, *d: x.permute(*d))(o, 0, 2, 1, 3).reshape(B, S, D) @ wo

    def _B_ref(x, wqkv, wo):
        B, S, D = x.shape
        H = 32; Dh = D // H
        W, dil = 8, 2
        qkv = (lambda x, *d: x.permute(*d))((x @ wqkv).reshape(B, S, 3, H, Dh), 2, 0, 3, 1, 4)
        q, k, v = qkv[0], qkv[1], qkv[2]
        scale = Dh ** -0.5
        pos = torch.arange(S)
        off = torch.arange(W) * dil
        idx = pos[:, None] - off[None, :]
        mask = idx >= 0
        idx_c = torch.where(mask, idx, 0).reshape(-1)
        kg = k[:, :, idx_c, :].reshape(B, H, S, W, Dh)
        vg = v[:, :, idx_c, :].reshape(B, H, S, W, Dh)
        logits = torch.einsum("bhsd,bhswd->bhsw", q, kg) * scale
        logits = torch.where(mask[None, None, :, :], logits, -1e9)
        attn = _softmax(logits, axis=-1)
        o = torch.einsum("bhsw,bhswd->bhsd", attn, vg)
        return (lambda x, *d: x.permute(*d))(o, 0, 2, 1, 3).reshape(B, S, D) @ wo

    a = _A_ref(A_x, A_wqkv, A_wo)
    b = _B_ref(B_x, B_wqkv, B_wo)
    return torch.concatenate([a, b], axis=-1)
```

```python
import re

class Asm:
    def __init__(self):
        self.lines = []
        self.nlabel = 0
    def __call__(self, s=''):
        for l in s.split('\n'):
            self.lines.append(l)
    def label(self, name):
        self.lines.append(name + ':')
    def newlabel(self, p='L'):
        self.nlabel += 1
        return '%s_%d' % (p, self.nlabel)
    def text(self):
        return '\n'.join(self.lines) + '\n'

def kernel_begin(a, name):
    a('.text')
    a('.globl %s' % name)
    a('.p2align 8')
    a('.type %s,@function' % name)
    a('%s:' % name)

def kernel_desc(a, name, vgpr, sgpr=102, accum=None, kernarg=72):
    if accum is None:
        accum = (vgpr + 3) // 4 * 4
    a('.section .rodata,"a"')
    a('.p2align 6')
    a('.amdhsa_kernel %s' % name)
    a('  .amdhsa_next_free_vgpr %d' % vgpr)
    a('  .amdhsa_next_free_sgpr %d' % sgpr)
    a('  .amdhsa_accum_offset %d' % accum)
    a('  .amdhsa_group_segment_fixed_size 0')
    a('  .amdhsa_kernarg_size %d' % kernarg)
    a('  .amdhsa_user_sgpr_count 2')
    a('  .amdhsa_user_sgpr_kernarg_segment_ptr 1')
    a('  .amdhsa_system_sgpr_workgroup_id_x 1')
    a('  .amdhsa_float_denorm_mode_32 3')
    a('.end_amdhsa_kernel')

_REG = re.compile(r'^(-|\|)?(abs\()?([vas])(\d+)\)?\|?$')
_RNG = re.compile(r'^(-)?([vas])\[(\d+):(\d+)\]$')

def regs_of(tok):
    tok = tok.strip()
    m = _REG.match(tok)
    if m: return {(m.group(3), int(m.group(4)))}
    m = _RNG.match(tok)
    if m: return {(m.group(2), i) for i in range(int(m.group(3)), int(m.group(4)) + 1)}
    if tok == 'vcc': return {('s', 'vcc_lo'), ('s', 'vcc_hi')}
    if tok in ('vcc_lo', 'vcc_hi'): return {('s', tok)}
    if tok == 'exec': return {('s', 'exec_lo'), ('s', 'exec_hi')}
    if tok in ('exec_lo', 'exec_hi'): return {('s', tok)}
    if tok == 'm0': return {('s', 'm0')}
    return set()

TRANS = ('v_exp_f32', 'v_log_f32', 'v_rcp_f32', 'v_rsq_f32', 'v_sqrt_f32', 'v_sin_f32', 'v_cos_f32', 'v_rcp_iflag_f32')

class Ins:
    pass

def parse(line):
    s = line.split(';')[0].split('//')[0].strip()
    if not s or s.endswith(':') or s.startswith('.'):
        return None
    parts = s.split(None, 1)
    I = Ins(); I.text = s; I.op = parts[0]
    op = I.op
    base = re.sub(r'_(e32|e64|dpp|sdwa)$', '', op)
    I.base = base
    rest = parts[1] if len(parts) > 1 else ''
    toks = [t.strip() for t in rest.split(',')] if rest else []
    ops = []
    for t in toks:
        m = re.match(r'^(-?\|?(?:abs\()?[vas]\[\d+:\d+\]|-?\|?(?:abs\()?[vas]\d+\)?\|?|vcc_lo|vcc_hi|vcc|exec_lo|exec_hi|exec|m0|off|[^ ]+)(.*)$', t)
        ops.append(m.group(1) if m else t)
    I.ops = ops
    I.vw = set(); I.vr = set(); I.sw = set(); I.sr = set()
    I.kind = 'other'; I.ws = 1
    I.mfma = False; I.trans = False; I.dpp = ('dpp' in op) or (' row_' in s) or ('quad_perm' in s)
    def addr(tok):
        for r in regs_of(tok):
            (I.sr if r[0] == 's' else I.vr).add(r)
    def addw(tok):
        for r in regs_of(tok):
            (I.sw if r[0] == 's' else I.vw).add(r)
    if op == 's_nop':
        I.kind = 'nop'; I.ws = int(ops[0], 0) + 1
    elif op.startswith('v_mfma'):
        I.kind = 'mfma'; I.mfma = True
        I.D = regs_of(ops[0]); I.A = regs_of(ops[1]); I.B = regs_of(ops[2]); I.C = regs_of(ops[3])
        I.passes = 8 if '32x32' in op else 4
        I.vw = set(I.D); I.vr = I.A | I.B | I.C
    elif op.startswith('v_'):
        I.kind = 'valu'
        I.trans = base in TRANS
        if base.startswith('v_cmp'):
            addw(ops[0]); [addr(t) for t in ops[1:]]
        elif base in ('v_readfirstlane_b32', 'v_readlane_b32'):
            addw(ops[0]); [addr(t) for t in ops[1:]]
        elif base.startswith('v_permlane') and 'swap' in base:
            addw(ops[0]); addw(ops[1]); addr(ops[0]); addr(ops[1])
        elif base in ('v_add_co_u32', 'v_sub_co_u32', 'v_subrev_co_u32', 'v_addc_co_u32', 'v_subb_co_u32'):
            addw(ops[0]); addw(ops[1]); [addr(t) for t in ops[2:]]
        elif base in ('v_fmac_f32', 'v_pk_fmac_f16', 'v_dot2c_f32_bf16'):
            addw(ops[0]); [addr(t) for t in ops]
        else:
            addw(ops[0]); [addr(t) for t in ops[1:]]
            if I.dpp: addr(ops[0])
    elif op.startswith('ds_'):
        I.kind = 'ds'
        if 'read' in op or 'bpermute' in op or 'swizzle' in op or 'permute' in op:
            addw(ops[0]); [addr(t) for t in ops[1:]]
        else:
            [addr(t) for t in ops]
    elif op.startswith('buffer_') or op.startswith('global_'):
        I.kind = 'vmem'
        I.lds = (' lds' in s) or ('_lds_' in op)
        if op in ('buffer_inv', 'buffer_wbl2'):
            pass
        elif I.lds:
            [addr(t) for t in ops]; I.sr.add(('s', 'm0'))
        elif '_load' in op:
            addw(ops[0]); [addr(t) for t in ops[1:]]
        elif '_store' in op:
            [addr(t) for t in ops]
            I.wide = ('x3' in op or 'x4' in op)
            I.data = regs_of(ops[0]) if op.startswith('buffer_') else regs_of(ops[1])
        elif 'atomic' in op:
            if ' sc0' in s and op.startswith('global_'):
                addw(ops[0]); [addr(t) for t in ops[1:]]
            else:
                [addr(t) for t in ops]
                if ' sc0' in s: addw(ops[0])
    elif op.startswith('s_'):
        I.kind = 'salu'
        if op in ('s_waitcnt', 's_barrier', 's_endpgm', 's_branch', 's_sleep', 's_setprio') or op.startswith('s_cbranch'):
            if op in ('s_cbranch_vccz', 's_cbranch_vccnz'): I.sr |= regs_of('vcc')
        elif op.startswith('s_cmp') or op.startswith('s_bitcmp'):
            [addr(t) for t in ops]
        elif op.startswith('s_load') or op.startswith('s_memtime') or op.startswith('s_memrealtime') or op.startswith('s_getreg') or op == 's_getpc_b64':
            addw(ops[0]); [addr(t) for t in ops[1:]]
        elif op == 's_setpc_b64':
            addr(ops[0])
        elif 'saveexec' in op:
            addw(ops[0]); addr(ops[1]); I.sw |= regs_of('exec'); I.sr |= regs_of('exec')
        else:
            addw(ops[0]); [addr(t) for t in ops[1:]]
    return I

def need(P, I):
    n = 0
    if P.kind == 'valu':
        if I.kind == 'mfma' and (P.vw & I.vr): n = max(n, 2)
        if I.kind == 'valu':
            if I.base.startswith('v_permlane') and (P.vw & I.vr): n = max(n, 2)
            if I.dpp and (P.vw & I.vr): n = max(n, 2)
            if I.base in ('v_readfirstlane_b32', 'v_readlane_b32') and (P.vw & I.vr): n = max(n, 1)
            if P.trans and (P.vw & I.vr): n = max(n, 1)
            if P.sw & I.sr: n = max(n, 2)
            if I.base in ('v_readlane_b32', 'v_writelane_b32') and (P.sw & I.sr): n = max(n, 4)
        if I.kind == 'vmem' and (P.sw & I.sr): n = max(n, 5)
        if I.kind == 'salu' and (P.sw & I.sr): n = max(n, 4)
        if I.kind in ('vmem', 'ds') and P.trans and (P.vw & I.vr): n = max(n, 1)
    elif P.kind == 'mfma':
        p8 = P.passes == 8
        if I.kind == 'mfma':
            if P.D & I.C:
                if P.D == I.C and P.passes == I.passes: pass
                else: n = max(n, 10 if p8 else 6)
            if P.D & (I.A | I.B): n = max(n, 12 if p8 else 8)
            if (P.D & I.D) and not (P.D == I.C and P.passes == I.passes):
                n = max(n, 10 if p8 else 6)
        elif I.kind == 'valu':
            if P.D & (I.vr | I.vw): n = max(n, 12 if p8 else 8)
            if P.C & I.vw: n = max(n, 7 if p8 else 3)
        elif I.kind in ('vmem', 'ds'):
            if P.D & (I.vr | I.vw): n = max(n, 12 if p8 else 8)
            if P.C & I.vw: n = max(n, 7 if p8 else 3)
    elif P.kind == 'vmem':
        if getattr(P, 'wide', False) and (P.data & I.vw):
            n = max(n, 2)
    elif P.kind == 'salu':
        if ('s', 'm0') in P.sw and I.kind == 'vmem' and getattr(I, 'lds', False): n = max(n, 1)
    return n

WIN = 14

def required_pad(hist, I):
    d = 0; pad = 0
    for P in reversed(hist):
        if d >= WIN: break
        r = need(P, I)
        if r > d: pad = max(pad, r - d)
        d += P.ws
    return pad

def fix_hazards(lines, verbose=False):
    out = []; hist = []; nins = 0
    for l in lines:
        I = parse(l)
        if I is None:
            out.append(l); continue
        pad = required_pad(hist, I)
        while pad > 0:
            k = min(pad, 16)
            nl = 's_nop %d' % (k - 1)
            out.append(nl + '   ; hazard pad'); hist.append(parse(nl)); pad -= k; nins += 1
        out.append(l); hist.append(I)
        if len(hist) > 40: hist = hist[-40:]
        if I.op in ('s_endpgm', 's_branch', 's_setpc_b64'):
            hist = []
    if verbose: print('hazard pads inserted:', nins)
    labels = {}; ins = []
    for l in out:
        s = l.split(';')[0].strip()
        if s.endswith(':') and not s.startswith('.'):
            labels[s[:-1]] = len(ins)
        I = parse(l)
        if I is not None: ins.append(I)
    for idx, I in enumerate(ins):
        if I.op == 's_branch' or I.op.startswith('s_cbranch'):
            tgt = labels.get(I.ops[0])
            if tgt is None: continue
            h = ins[max(0, idx - 30): idx + 1]
            for k in range(len(h) - 2, -1, -1):
                if h[k].op in ('s_endpgm', 's_branch', 's_setpc_b64'):
                    h = h[k + 1:]; break
            h = list(h); d = 0
            for J in ins[tgt: tgt + 16]:
                p = required_pad(h, J)
                if p > 0:
                    raise RuntimeError('hazard across branch "%s" -> "%s" needs %d more' % (I.text, J.text, p))
                h.append(J); d += J.ws
                if d >= WIN or J.op in ('s_endpgm', 's_branch', 's_setpc_b64'): break
    return out
```

```python
import sys, struct
from asmlib import *

KNAME = 'concat_heads__linear_attn_block__sliding_local_dilated__prompt_kernel'
OPT = dict(stamps=0, out='k.s', spin=1 << 20, stop='')
for arg in sys.argv[1:]:
    k, v = arg.split('=')
    OPT[k] = int(v, 0) if k not in ('out', 'stop') else v

def fbits(x): return struct.unpack('<I', struct.pack('<f', x))[0]
LOG2E = 1.4426950408889634
NEG = -1.0e30

CNT16 = 0x0000; CNT8 = 0x1000; KV = 0x4000; KVS = 1280; CH = 0x100000; STAMP = 0x600000
WS_SIZE = 0x800000
NZERO_WG = 16
WO_BASE = 98304
B_SLOT = 43008
A_SLOT = 16384
A_SCR = 81920
A_ZSCR = 32768
LDS_BYTES = 163840

S_AX, S_AW, S_AO, S_BX, S_BW, S_BO, S_OUT, S_DBG, S_WS = 8, 10, 12, 14, 16, 18, 20, 22, 24
sBR, sRB, sHG, sWV = 26, 27, 28, 29
SRD_X, SRD_W, SRD_O, SRD_WS, SRD_OUT = 32, 36, 40, 44, 48
def srd(r): return 's[%d:%d]' % (r, r + 3)
def vr(r, n=1): return 'v%d' % r if n == 1 else 'v[%d:%d]' % (r, r + n - 1)
def ar(r, n=1): return 'a%d' % r if n == 1 else 'a[%d:%d]' % (r, r + n - 1)

a = Asm()
NSTAMP = [0]
def stamp(name):
    if not OPT['stamps']: return
    i = NSTAMP[0]; NSTAMP[0] += 1
    assert i < 13
    a('s_memtime s[%d:%d]   ; stamp %s' % (76 + 2 * i, 77 + 2 * i, name))

class VM:
    def __init__(self): self.q = []
    def issue(self, tag): self.q.append(tag)
    def wait(self, tag):
        idx = max(i for i, t in enumerate(self.q) if t == tag)
        n = len(self.q) - 1 - idx
        assert n <= 63
        a('s_waitcnt vmcnt(%d)   ; %s' % (n, tag))
        self.q = self.q[idx + 1:]
        return n
    def all(self):
        a('s_waitcnt vmcnt(0)'); self.q = []

def make_srd(r, sp, size):
    a('s_mov_b32 s%d, s%d' % (r, sp)); a('s_mov_b32 s%d, s%d' % (r + 1, sp + 1))
    a('s_mov_b32 s%d, 0x%x' % (r + 2, size)); a('s_mov_b32 s%d, 0x20000' % (r + 3))

def interleave(main, extra, start=0, every=1):
    extra = list(extra); k = 0
    for i, m in enumerate(main):
        a(m)
        if i >= start and (i - start) % every == 0 and extra:
            a(extra.pop(0))
    for e in extra: a(e)

def spin_wait(vaddr_setup, base, cmp_lit, name, vd=17):
    L = 'L_spin_' + name; D = 'L_spun_' + name
    a('s_mov_b32 s56, 0')
    a.label(L)
    a('global_load_dword v%d, %s, s[%d:%d] sc1' % (vd, vaddr_setup, base, base + 1))
    a('s_waitcnt vmcnt(0)')
    a('v_readfirstlane_b32 s57, v%d' % vd)
    a('s_add_u32 s56, s56, 1')
    a('s_cmp_ge_u32 s56, 0x%x' % OPT['spin'])
    a('s_cbranch_scc1 %s' % D)
    a('s_cmp_lt_u32 s57, %d' % cmp_lit)
    a('s_cbranch_scc1 %s' % L)
    a.label(D)

def prologue():
    a('s_cmp_ge_u32 s2, 256')
    a('s_cbranch_scc0 L_go')
    a('s_endpgm')
    a.label('L_go')
    a('s_load_dwordx16 s[8:23], s[0:1], 0')
    a('s_load_dwordx2 s[24:25], s[0:1], 64')
    stamp('start')
    a('v_and_b32 v1, 63, v0')
    a('v_lshrrev_b32 v2, 6, v0')
    a('s_lshr_b32 s26, s2, 2')
    a('v_readfirstlane_b32 s29, v2')
    a('s_and_b32 s26, s26, 1')
    a('s_and_b32 s52, s2, 3')
    a('s_lshr_b32 s53, s2, 3')
    a('s_lshr_b32 s27, s53, 3')
    a('s_lshl_b32 s52, s52, 2')
    a('s_add_u32 s27, s27, s52')
    a('s_and_b32 s28, s53, 7')
    a('v_lshrrev_b32 v16, 3, v1')
    a('s_lshl_b32 s52, s29, 4')
    a('v_add_u32 v17, s52, v16')
    a('v_mul_u32_u24 v17, 3072, v17')
    a('v_lshrrev_b32 v18, 4, v1')
    a('v_and_b32 v19, 1, v18')
    a('v_lshlrev_b32 v19, 1, v19')
    a('v_and_b32 v20, 7, v1')
    a('v_xor_b32 v19, v19, v20')
    a('v_lshlrev_b32 v19, 4, v19')
    a('s_lshl_b32 s52, s28, 7')
    a('v_add3_u32 v7, v17, v19, s52')
    a('v_xor_b32 v8, 64, v7')
    a('v_add_u32 v8, %d, v8' % (8 * 3072))
    a('v_lshlrev_b32 v9, 10, v18')
    a('v_bfe_u32 v21, v1, 2, 2')
    a('v_lshl_add_u32 v9, v21, 7, v9')
    a('v_and_b32 v21, 3, v1')
    a('v_lshl_add_u32 v9, v21, 3, v9')
    a('v_bfe_u32 v21, v1, 3, 2')
    a('v_lshl_add_u32 v9, v21, 5, v9')
    a('s_waitcnt lgkmcnt(0)')
    make_srd(SRD_WS, S_WS, WS_SIZE)
    a('s_cmp_ge_u32 s2, %d' % NZERO_WG)
    a('s_cbranch_scc1 L_nozero')
    a('v_mov_b32 v24, 0'); a('v_mov_b32 v25, 0'); a('v_mov_b32 v26, 0'); a('v_mov_b32 v27, 0')
    a('v_lshlrev_b32 v22, 4, v1')
    a('s_lshl_b32 s52, s2, 12')
    a('s_lshl_b32 s53, s29, 10')
    a('s_add_u32 s52, s52, s53')
    a('buffer_store_dwordx4 v[24:27], v22, %s, s52 offen sc1' % srd(SRD_WS))
    a.label('L_nozero')
    a('s_cmp_eq_u32 s26, 0')
    a('s_cbranch_scc0 L_B')

def zero_signal(vm_after):
    L = a.newlabel('L_nosig')
    a('s_cmp_ge_u32 s2, %d' % NZERO_WG)
    a('s_cbranch_scc1 %s' % L)
    a('s_waitcnt vmcnt(%d)' % vm_after)
    a('s_barrier')
    a('s_cmp_eq_u32 s29, 0')
    a('s_cbranch_scc0 %s' % L)
    a('v_mov_b32 v22, 0'); a('v_mov_b32 v23, 1')
    a('s_mov_b64 exec, 1')
    a('global_atomic_add v22, v23, s[%d:%d] sc1' % (S_DBG, S_DBG + 1))
    a('s_mov_b64 exec, -1')
    a.label(L)

def check_init(name, va=16):
    a('v_mov_b32 v%d, 0' % va)
    spin_wait('v%d' % va, S_DBG, NZERO_WG, name, vd=va + 1)

def wo_dma_setup():
    pass

def wo_dma_list(lo, hi, voff, stmp):
    L = []
    for ii in range(lo, hi):
        L.append('s_add_u32 m0, s70, 0x%x\ns_mov_b32 s%d, 0x%x\nbuffer_load_dwordx4 v%d, %s, s%d offen lds' %
                 (ii * 1024, stmp, ii * 8192, voff, srd(SRD_O), stmp))
    return L

def wo_voff(vdst, vt):
    a('v_lshrrev_b32 v%d, 3, v1' % vt)
    a('s_lshl_b32 s52, s29, 7')
    a('v_add_u32 v%d, s52, v%d' % (vt, vt))
    a('v_lshlrev_b32 v%d, 10, v%d' % (vt, vt))
    a('v_bfe_u32 v%d, v1, 4, 1' % (vt + 1))
    a('v_lshlrev_b32 v%d, 2, v%d' % (vt + 1, vt + 1))
    a('v_and_b32 v%d, 7, v1' % (vt + 2))
    a('v_xor_b32 v%d, v%d, v%d' % (vt + 1, vt + 1, vt + 2))
    a('v_lshlrev_b32 v%d, 4, v%d' % (vt + 1, vt + 1))
    a('s_lshl_b32 s52, s28, 7')
    a('v_add3_u32 v%d, v%d, v%d, s52' % (vdst, vt, vt + 1))
    a('s_lshl_b32 s70, s29, 14')
    a('s_add_u32 s70, s70, 0x%x' % WO_BASE)

def publish_signal(br):
    a('s_waitcnt vmcnt(0)')
    a('s_barrier')
    stamp('published')
    a('s_lshl_b32 s59, s27, 8')
    a('s_add_u32 s59, s59, 0x%x' % (CNT8 + br * 16 * 256))
    a('s_cmp_eq_u32 s29, 0')
    a('s_cbranch_scc0 L_pub_%d' % br)
    a('v_mov_b32 v16, s59'); a('v_mov_b32 v18, 1')
    a('s_mov_b64 exec, 1')
    a('global_atomic_add v16, v18, s[%d:%d] sc1' % (S_WS, S_WS + 1))
    a('s_mov_b64 exec, -1')
    spin_wait('v16', S_WS, 8, 'cnt8_%d' % br)
    a.label('L_pub_%d' % br)

B_F = [dict(x=20, w=56), dict(x=68, w=104)]
B_Q, B_K, B_V = 116, 148, 184
B_CPREV, B_CCUR, B_CH0, B_CH1, B_ONES = 220, 224, 228, 232, 236

def b_dma(slot_expr_x, slot_expr_h, slot_expr_w, lit=None):
    L = []
    lit = lit or 0
    for seg in (1, 2, 0):
        for ii in range(2):
            L.append('s_add_u32 m0, %s, 0x%x\nbuffer_load_dwordx4 v%d, %s, s%d offen lds' %
                     (slot_expr_w, lit + seg * 8192 + ii * 1024, 7 + ii, srd(SRD_W), 61 + seg))
    for ii in range(4):
        L.append('s_add_u32 m0, %s, 0x%x\nbuffer_load_dwordx4 v%d, %s, s60 offen lds' %
                 (slot_expr_x, lit + ii * 1024, 2 + ii, srd(SRD_X)))
    L.append('s_add_u32 m0, %s, 0x%x\ns_mov_b64 exec, 0xffffffff\nbuffer_load_dwordx4 v6, %s, s60 offen lds\ns_mov_b64 exec, -1' %
             (slot_expr_h, lit, srd(SRD_X)))
    return L

def b_dma_advance():
    return ['s_add_u32 s60, s60, 128\ns_add_u32 s61, s61, 0x30000', 's_add_u32 s62, s62, 0x30000\ns_add_u32 s63, s63, 0x30000']

def b_reads(F, vx, vw, kk):
    L = []
    for seg in range(3):
        for jj in range(2):
            L.append('ds_read_b64_tr_b16 %s, v%d offset:%d' % (vr(F['w'] + seg * 4 + jj * 2, 2), vw, seg * 8192 + kk * 4096 + jj * 512))
    for t in range(9):
        L.append('ds_read_b128 %s, v%d offset:%d' % (vr(F['x'] + 4 * t, 4), vx, t * 2048))
    return L

def b_mfmas(F):
    L = []
    for t in range(9):
        x = vr(F['x'] + 4 * t, 4)
        if t < 8:
            L.append('v_mfma_f32_16x16x32_bf16 %s, %s, %s, %s' % (vr(B_Q + 4 * t, 4), vr(F['w'], 4), x, vr(B_Q + 4 * t, 4)))
        L.append('v_mfma_f32_16x16x32_bf16 %s, %s, %s, %s' % (vr(B_K + 4 * t, 4), vr(F['w'] + 4, 4), x, vr(B_K + 4 * t, 4)))
        L.append('v_mfma_f32_16x16x32_bf16 %s, %s, %s, %s' % (vr(B_V + 4 * t, 4), x, vr(F['w'] + 8, 4), vr(B_V + 4 * t, 4)))
    return L

def b_stage(dma, vmn, last=False, extra1=None):
    a('v_add_u32 v13, s64, v11')
    a('v_add_u32 v14, s64, v12')
    if not last:
        a('v_add_u32 v15, s65, v10')
        a('v_add_u32 v16, s65, v12')
    if dma:
        a('s_add_u32 s66, s64, s71'); a('s_add_u32 s67, s64, s72'); a('s_add_u32 s68, s64, s73')
    interleave(b_mfmas(B_F[0]), b_reads(B_F[1], 13, 14, 1), start=0, every=1)
    a('s_waitcnt lgkmcnt(0)')
    if vmn is not None: a('s_waitcnt vmcnt(%d)' % vmn)
    a('s_barrier')
    ex = []
    if not last: ex += b_reads(B_F[0], 15, 16, 0)
    if dma: ex += b_dma('s66', 's67', 's68') + b_dma_advance()
    if extra1: ex += extra1
    interleave(b_mfmas(B_F[1]), ex, start=0, every=1)
    if not last:
        a('s_waitcnt lgkmcnt(0)')
        a('s_mov_b32 s64, s65')
        a('s_add_u32 s65, s65, %d' % B_SLOT)
        a('s_cmp_eq_u32 s65, %d' % (3 * B_SLOT))
        a('s_cselect_b32 s65, 0, s65')

def b_path():
    a.label('L_B')
    make_srd(SRD_X, S_BX, 2048 * 1024)
    make_srd(SRD_W, S_BW, 512 * 3072)
    make_srd(SRD_O, S_BO, 512 * 1024)
    a('s_lshl_b32 s52, s27, 7')
    a('s_and_b32 s53, s29, 1')
    a('s_lshr_b32 s54, s29, 1')
    a('s_lshl_b32 s55, s53, 6')
    a('s_add_u32 s55, s55, s54')
    a('s_add_u32 s55, s55, s52')
    a('s_lshl_b32 s55, s55, 10')
    a('v_lshlrev_b32 v17, 11, v16')
    a('v_xor_b32 v19, v20, v18')
    a('v_lshlrev_b32 v19, 4, v19')
    a('v_add3_u32 v2, v17, v19, s55')
    a('v_xor_b32 v3, 64, v2')
    a('v_add_u32 v4, 32768, v2')
    a('v_add_u32 v5, 49152, v3')
    a('v_add_u32 v3, 16384, v3')
    a('s_lshl_b32 s55, s53, 3')
    a('s_add_u32 s55, s55, s54')
    a('s_add_u32 s55, s55, s52')
    a('s_sub_u32 s55, s55, 16')
    a('s_lshl_b32 s55, s55, 10')
    a('s_lshl_b32 s56, s29, 1')
    a('v_add_u32 v19, s56, v18')
    a('v_and_b32 v19, 7, v19')
    a('v_xor_b32 v19, v19, v20')
    a('v_lshlrev_b32 v19, 4, v19')
    a('v_add3_u32 v6, v17, v19, s55')
    a('s_lshl_b32 s71, s29, 12')
    a('s_lshl_b32 s72, s29, 9'); a('s_add_u32 s72, s72, 16384')
    a('s_lshl_b32 s73, s29, 11'); a('s_add_u32 s73, s73, 18432')
    a('s_mov_b32 s60, 0'); a('s_mov_b32 s61, 0'); a('s_mov_b32 s62, 1024'); a('s_mov_b32 s63, 2048')
    for st in range(3):
        for it in b_dma('s71', 's72', 's73', lit=st * B_SLOT): a(it)
        for it in b_dma_advance(): a(it)
    stamp('B_issued')
    zero_signal(33)
    a('v_and_b32 v21, 15, v1')
    a('v_lshlrev_b32 v10, 7, v21')
    a('v_bfe_u32 v22, v1, 1, 3')
    a('v_xor_b32 v22, v22, v18')
    a('v_lshl_add_u32 v10, v22, 4, v10')
    a('v_xor_b32 v11, 64, v10')
    a('s_lshl_b32 s52, s29, 5')
    a('v_xor_b32 v12, s52, v9')
    a('v_add_u32 v12, 18432, v12')
    for r in range(B_Q, B_V + 36): a('v_mov_b32 v%d, 0' % r)
    a('s_mov_b32 s52, 0x%x' % fbits(NEG))
    a('s_cmp_eq_u32 s27, 0')
    a('s_cselect_b32 s53, s52, 0')
    a('v_mov_b32 v22, s52')
    a('v_lshlrev_b32 v23, 2, v18')
    for r in range(4):
        a('v_add_u32 v24, %d, v23' % r)
        a('v_sub_u32 v25, v24, v21')
        a('v_cmp_le_i32 vcc, 9, v25')
        a('v_cndmask_b32_e64 v%d, v22, 0, vcc' % (B_CPREV + r))
        a('v_sub_u32 v26, v21, v24')
        a('v_cmp_ge_u32 vcc, 7, v26')
        a('v_cndmask_b32_e64 v%d, v22, 0, vcc' % (B_CCUR + r))
        a('v_cmp_le_i32 vcc, 1, v25')
        a('v_cmp_ge_u32 s[54:55], 7, v24')
        a('s_and_b64 vcc, vcc, s[54:55]')
        a('v_cndmask_b32_e64 v%d, v22, 0, vcc' % (B_CH0 + r))
        a('v_min_f32 v%d, s53, v%d' % (B_CH0 + r, B_CH0 + r))
        a('v_min_f32 v%d, s53, v%d' % (B_CH1 + r, B_CPREV + r))
        a('v_mov_b32 v%d, 0x3f803f80' % (B_ONES + r))
    wo_voff(17, 24)
    a('s_mov_b32 s64, 0'); a('s_mov_b32 s65, %d' % B_SLOT)
    a('s_waitcnt vmcnt(22)')
    a('s_barrier')
    stamp('B_first')
    for it in b_reads(B_F[0], 10, 12, 0): a(it)
    a('s_waitcnt lgkmcnt(0)')
    a('s_mov_b32 s69, 0')
    a.label('L_Bloop')
    b_stage(True, 11)
    a('s_add_u32 s69, s69, 1')
    a('s_cmp_lt_u32 s69, 5')
    a('s_cbranch_scc1 L_Bloop')
    b_stage(False, 11)
    b_stage(False, 0)
    b_stage(False, None, last=True, extra1=wo_dma_list(0, 16, 17, 52))
    stamp('B_gemm')
    b_attention()
    a('s_lshl_b32 s52, s27, 7')
    a('s_and_b32 s53, s29, 1'); a('s_lshl_b32 s53, s53, 6')
    a('s_lshr_b32 s54, s29, 1')
    a('s_add_u32 s52, s52, s53'); a('s_add_u32 s52, s52, s54')
    a('s_lshl_b32 s74, s52, 11'); a('s_add_u32 s74, s74, 1024')
    a('s_mov_b32 s75, 12')
    publish_signal(1)

def b_attention():
    QP, KP, LV = 20, 36, (54, 64)
    S = 116; MX = 180; T = 188; P = 74; OP = 20
    for t in range(8):
        a('v_cvt_pk_bf16_f32 v%d, v%d, v%d' % (QP + 2 * t, B_Q + 4 * t, B_Q + 4 * t + 1))
        a('v_cvt_pk_bf16_f32 v%d, v%d, v%d' % (QP + 2 * t + 1, B_Q + 4 * t + 2, B_Q + 4 * t + 3))
    for t in range(9):
        a('v_cvt_pk_bf16_f32 v%d, v%d, v%d' % (KP + 2 * t, B_K + 4 * t, B_K + 4 * t + 1))
        a('v_cvt_pk_bf16_f32 v%d, v%d, v%d' % (KP + 2 * t + 1, B_K + 4 * t + 2, B_K + 4 * t + 3))
    for p in range(2):
        for k, t in enumerate([8] + [4 * p + b for b in range(4)]):
            a('v_cvt_pk_bf16_f32 v%d, v%d, v%d' % (LV[p] + 2 * k, B_V + 4 * t, B_V + 4 * t + 1))
            a('v_cvt_pk_bf16_f32 v%d, v%d, v%d' % (LV[p] + 2 * k + 1, B_V + 4 * t + 2, B_V + 4 * t + 3))
    for t in range(8):
        b = t & 3; p = t >> 2
        prev = t - 1 if b > 0 else 8
        cm = B_CPREV if b > 0 else (B_CH0 if p == 0 else B_CH1)
        a('v_mfma_f32_16x16x16_bf16 %s, %s, %s, %s' % (vr(S + 8 * t, 4), vr(KP + 2 * prev, 2), vr(QP + 2 * t, 2), vr(cm, 4)))
        a('v_mfma_f32_16x16x16_bf16 %s, %s, %s, %s' % (vr(S + 8 * t + 4, 4), vr(KP + 2 * t, 2), vr(QP + 2 * t, 2), vr(B_CCUR, 4)))
    for t in range(8):
        s = S + 8 * t
        a('v_max3_f32 v%d, v%d, v%d, v%d' % (MX + t, s, s + 1, s + 2))
        a('v_max3_f32 v%d, v%d, v%d, v%d' % (T + t, s + 3, s + 4, s + 5))
        a('v_max3_f32 v%d, v%d, v%d, v%d' % (MX + t, MX + t, s + 6, s + 7))
        a('v_max_f32 v%d, v%d, v%d' % (MX + t, MX + t, T + t))
    a('s_mov_b32 s52, 0x%x' % fbits(0.25 * LOG2E))
    a('s_mov_b32 s53, s52')
    def batch(m, tmp):
        A_, B_, C_, D_ = m, m + 1, m + 2, m + 3
        h = tmp
        return ['v_permlane16_swap_b32 v%d, v%d' % (A_, B_),
                'v_permlane16_swap_b32 v%d, v%d' % (C_, D_),
                'v_max_f32 v%d, v%d, v%d' % (A_, A_, B_),
                'v_max_f32 v%d, v%d, v%d' % (C_, C_, D_),
                'v_permlane32_swap_b32 v%d, v%d' % (A_, C_),
                'v_max_f32 v%d, v%d, v%d' % (A_, A_, C_),
                'v_mul_f32 v%d, s52, v%d' % (A_, A_),
                'v_mov_b32 v%d, v%d' % (C_, A_),
                'v_permlane32_swap_b32 v%d, v%d' % (A_, C_),
                'v_mov_b32 v%d, v%d' % (B_, A_),
                'v_mov_b32 v%d, v%d' % (D_, C_),
                'v_permlane16_swap_b32 v%d, v%d' % (A_, B_),
                'v_permlane16_swap_b32 v%d, v%d' % (C_, D_)]
    b0 = batch(MX, T); b1 = batch(MX + 4, T + 4)
    for x, y in zip(b0, b1):
        a(x); a(y)
    for t in range(8):
        s = S + 8 * t
        mreg = MX + (t & ~1); sel = t & 1
        for q in range(4):
            a('v_pk_fma_f32 %s, %s, s[52:53], %s op_sel:[0,0,%d] op_sel_hi:[1,1,%d] neg_lo:[0,0,1] neg_hi:[0,0,1]' %
              (vr(s + 2 * q, 2), vr(s + 2 * q, 2), vr(mreg, 2), sel, sel))
        for q in range(8):
            a('v_exp_f32 v%d, v%d' % (s + q, s + q))
        for q in range(4):
            a('v_cvt_pk_bf16_f32 v%d, v%d, v%d' % (P + 4 * t + q, s + 2 * q, s + 2 * q + 1))
    for t in range(8):
        b = t & 3; p = t >> 2
        a('v_mfma_f32_16x16x32_bf16 %s, %s, %s, 0' % (vr(S + 8 * t, 4), vr(LV[p] + 2 * b, 4), vr(P + 4 * t, 4)))
        a('v_mfma_f32_16x16x32_bf16 %s, %s, %s, 0' % (vr(S + 8 * t + 4, 4), vr(B_ONES, 4), vr(P + 4 * t, 4)))
    a('s_lshl_b32 s52, s28, 2'); a('s_add_u32 s52, s52, s29'); a('s_lshl_b32 s52, s52, 10')
    a('v_lshlrev_b32 v16, 4, v1'); a('v_add_u32 v16, s52, v16')
    a('s_add_u32 s53, s27, 16'); a('s_lshl_b32 s53, s53, 17'); a('s_add_u32 s53, s53, 0x%x' % CH)
    for pr in range(4):
        for u in range(2):
            t = 2 * pr + u; s = S + 8 * t
            a('v_rcp_f32 v%d, v%d' % (s + 4, s + 4))
        for u in range(2):
            t = 2 * pr + u; s = S + 8 * t
            a('v_pk_mul_f32 %s, %s, %s op_sel_hi:[1,0]' % (vr(s, 2), vr(s, 2), vr(s + 4, 2)))
            a('v_pk_mul_f32 %s, %s, %s op_sel_hi:[1,0]' % (vr(s + 2, 2), vr(s + 2, 2), vr(s + 4, 2)))
            a('v_cvt_pk_bf16_f32 v%d, v%d, v%d' % (OP + 4 * pr + 2 * u, s, s + 1))
            a('v_cvt_pk_bf16_f32 v%d, v%d, v%d' % (OP + 4 * pr + 2 * u + 1, s + 2, s + 3))
        a('v_permlane16_swap_b32 v%d, v%d' % (OP + 4 * pr, OP + 4 * pr + 2))
        a('v_permlane16_swap_b32 v%d, v%d' % (OP + 4 * pr + 1, OP + 4 * pr + 3))
        a('s_add_u32 s54, s53, 0x%x' % (pr * 32768))
        a('buffer_store_dwordx4 %s, v16, %s, s54 offen sc1' % (vr(OP + 4 * pr, 4), srd(SRD_WS)))
    stamp('B_att')
    check_init('B')

A_F = [20, 52]
A_K, A_V, A_Q = 84, 116, 148
def a_xreg(ks, bb): return (ks * 2 + bb) * 4

def a_units(st):
    if st < 8: return [(1, st), (2, st)]
    q = st - 8
    return [(0, 2 * q), (0, 2 * q + 1)]

def a_dma(st):
    L = []
    slot = (st % 5) * A_SLOT
    for u, (seg, c) in enumerate(a_units(st)):
        for ii in range(2):
            L.append('s_add_u32 m0, s71, 0x%x\ns_mov_b32 s%d, 0x%x\nbuffer_load_dwordx4 v%d, %s, s%d offen lds' %
                     (slot + u * 8192 + ii * 1024, 52 + ii, c * 196608 + seg * 1024, 7 + ii, srd(SRD_W), 52 + ii))
    return L

def a_base(hh, off):
    if off >= 65536 - 13000: return 14 + hh, off - 65536 + 0
    return 10 + hh, off

def a_reads(F, st, step):
    L = []
    slot = (st % 5) * A_SLOT
    for f in range(8):
        hh = f & 3; hi = f >> 2
        if st < 8: u, kk = hi, step
        else: u, kk = step, hi
        for jj in range(2):
            off = slot + u * 8192 + kk * 4096 + jj * 512
            if slot >= 4 * A_SLOT: v, imm = 16 + 0, 0; v = 14 + hh; imm = off - 65536
            else: v = 10 + hh; imm = off
            assert 0 <= imm < 65536
            L.append('ds_read_b64_tr_b16 %s, v%d offset:%d' % (vr(F + 4 * f + 2 * jj, 2), v, imm))
    return L

def a_mfmas(F, st, step):
    L = []
    for f in range(8):
        hh = f & 3; hi = f >> 2
        for bb in range(2):
            w = vr(F + 4 * f, 4)
            if st < 8:
                ks = 2 * st + step
                x = ar(a_xreg(ks, bb), 4)
                acc = (A_K if hi == 0 else A_V) + (bb * 4 + hh) * 4
                L.append('v_mfma_f32_16x16x32_bf16 %s, %s, %s, %s' % (vr(acc, 4), x, w, vr(acc, 4)))
            else:
                c = 2 * (st - 8) + step
                ks = 2 * c + hi
                x = ar(a_xreg(ks, bb), 4)
                acc = A_Q + (bb * 4 + hh) * 4
                L.append('v_mfma_f32_16x16x32_bf16 %s, %s, %s, %s' % (vr(acc, 4), w, x, vr(acc, 4)))
    return L

def phi4(r, cm, tmp):
    L = []
    for q in range(2):
        L.append('v_pk_fma_f32 %s, %s, s[54:55], %s' % (vr(tmp + 2 * q, 2), vr(r + 2 * q, 2), vr(cm, 2)))
    for q in range(4):
        L.append('v_exp_f32_e64 v%d, v%d clamp' % (tmp + q, tmp + q))
    for q in range(4):
        L.append('v_max_f32 v%d, s58, v%d' % (r + q, r + q))
    for q in range(2):
        L.append('v_pk_add_f32 %s, %s, %s' % (vr(r + 2 * q, 2), vr(r + 2 * q, 2), vr(tmp + 2 * q, 2)))
    return L

def phi_consts(cm):
    a('s_mov_b32 s54, 0x%x' % fbits(LOG2E)); a('s_mov_b32 s55, s54')
    a('s_mov_b32 s58, 0x%x' % fbits(1e-6))
    a('v_mov_b32 v%d, 0x%x' % (cm, fbits(-1e-6 * LOG2E))); a('v_mov_b32 v%d, 0x%x' % (cm + 1, fbits(-1e-6 * LOG2E)))

def a_path():
    vm = VM()
    make_srd(SRD_X, S_AX, 2048 * 1024)
    make_srd(SRD_W, S_AW, 512 * 3072)
    make_srd(SRD_O, S_AO, 512 * 1024)
    a('s_lshl_b32 s52, s27, 7'); a('s_lshl_b32 s53, s29, 5'); a('s_add_u32 s52, s52, s53')
    a('v_and_b32 v21, 15, v1')
    a('v_add_u32 v2, s52, v21')
    a('v_lshlrev_b32 v2, 10, v2')
    a('v_lshl_add_u32 v2, v18, 4, v2')
    a('s_mov_b32 s60, 16384')
    a('s_lshl_b32 s71, s29, 11')
    def xload(ks):
        for bb in range(2):
            a('buffer_load_dwordx4 %s, v2, %s, %s offen offset:%d' % (ar(a_xreg(ks, bb), 4), srd(SRD_X), 's60' if bb else '0', ks * 64))
            vm.issue('x%d' % ks)
    for st in range(5):
        xload(2 * st); xload(2 * st + 1)
        for it in a_dma(st): a(it); vm.issue('W%d' % st)
    for ks in range(10, 16): xload(ks)
    stamp('A_issued')
    zero_signal(52)
    for hh in range(4):
        a('v_xor_b32 v%d, %d, v9' % (10 + hh, hh << 5))
        a('v_add_u32 v%d, 0x10000, v%d' % (14 + hh, 10 + hh))
    for r in range(A_K, A_K + 32): a('v_mov_b32 v%d, 0x%x' % (r, fbits(1e-6)))
    for r in range(A_V, A_V + 32): a('v_mov_b32 v%d, 0' % r)
    for r in range(A_Q, A_Q + 32): a('v_mov_b32 v%d, 0x%x' % (r, fbits(1e-6)))
    wo_voff(19, 180)
    a('v_mov_b32 v6, v19')
    vm.wait('W0')
    a('s_barrier')
    stamp('A_first')
    for it in a_reads(A_F[0], 0, 0): a(it)
    a('s_waitcnt lgkmcnt(0)')
    for st in range(12):
        interleave(a_mfmas(A_F[0], st, 0), a_reads(A_F[1], st, 1))
        a('s_waitcnt lgkmcnt(0)')
        if st + 1 <= 11: vm.wait('W%d' % (st + 1)) if ('W%d' % (st + 1)) in vm.q else None
        if st == 10:
            vm.wait('atom')
        a('s_barrier')
        if st == 10:
            a('s_cmp_eq_u32 s29, 0')
            a('s_cbranch_scc0 L_A_nosig16')
            a('s_lshl_b32 s52, s28, 8')
            a('v_mov_b32 v180, s52'); a('v_mov_b32 v181, 1')
            a('s_mov_b64 exec, 1')
            a('global_atomic_add v180, v181, s[%d:%d] sc1' % (S_WS, S_WS + 1))
            a('s_mov_b64 exec, -1')
            a.label('L_A_nosig16')
        ex = []
        if st + 1 <= 11: ex += a_reads(A_F[0], st + 1, 0)
        dm = []
        if st + 5 <= 11:
            dm = a_dma(st + 5); tag = 'W%d' % (st + 5)
        elif st <= 10:
            k = st - 7
            dm = wo_dma_list(4 * k, 4 * k + 4, 6, 52); tag = 'wo'
        m = a_mfmas(A_F[1], st, 1)
        ex2 = list(ex)
        seq = []
        for i, mm in enumerate(m):
            seq.append(mm)
            if ex2: seq.append(ex2.pop(0))
            if dm and i % 4 == 3:
                seq.append(dm.pop(0)); vm.issue(tag)
        for it in seq: a(it)
        for it in ex2: a(it)
        a('s_waitcnt lgkmcnt(0)')
        if st == 7:
            stamp('A_pass1')
            a_epi_k(vm)
            stamp('A_epik')
    stamp('A_pass2')
    a_epi_q(vm)
    a('s_lshl_b32 s52, s27, 7'); a('s_lshl_b32 s53, s29, 5'); a('s_add_u32 s52, s52, s53')
    a('s_lshl_b32 s74, s52, 11')
    a('s_mov_b32 s75, 11')
    publish_signal(0)
    a('s_branch L_P2')

def a_epi_k(vm):
    KP, VP = 184, 200
    TMP = 216; CM = 220; ONES = 224; KVR = 228; ZR = 244
    phi_consts(CM)
    for q in range(4): a('v_mov_b32 v%d, 0x3f803f80' % (ONES + q))
    for h in range(4):
        for bb in range(2):
            r = A_K + (bb * 4 + h) * 4
            for it in phi4(r, CM, TMP): a(it)
            a('v_cvt_pk_bf16_f32 v%d, v%d, v%d' % (KP + 4 * h + 2 * bb, r, r + 1))
            a('v_cvt_pk_bf16_f32 v%d, v%d, v%d' % (KP + 4 * h + 2 * bb + 1, r + 2, r + 3))
            r = A_V + (bb * 4 + h) * 4
            a('v_cvt_pk_bf16_f32 v%d, v%d, v%d' % (VP + 4 * h + 2 * bb, r, r + 1))
            a('v_cvt_pk_bf16_f32 v%d, v%d, v%d' % (VP + 4 * h + 2 * bb + 1, r + 2, r + 3))
    for h in range(4):
        a('v_mfma_f32_16x16x32_bf16 %s, %s, %s, 0' % (vr(A_V + 4 * h, 4), vr(VP + 4 * h, 4), vr(KP + 4 * h, 4)))
        a('v_mfma_f32_16x16x32_bf16 %s, %s, %s, 0' % (vr(A_K + 4 * h, 4), vr(ONES, 4), vr(KP + 4 * h, 4)))
    a('v_lshlrev_b32 v%d, 4, v1' % TMP)
    a('s_lshl_b32 s52, s29, 12')
    a('v_add_u32 v%d, s52, v%d' % (TMP + 1, TMP))
    a('v_lshlrev_b32 v%d, 2, v1' % (TMP + 2))
    a('s_lshl_b32 s52, s29, 10')
    a('v_add_u32 v%d, s52, v%d' % (TMP + 3, TMP + 2))
    a('v_add_u32 v%d, %d, v%d' % (TMP + 1, A_SCR, TMP + 1))
    for h in range(4):
        a('ds_write_b128 v%d, %s offset:%d' % (TMP + 1, vr(A_V + 4 * h, 4), h * 1024))
        a('ds_write_b32 v%d, v%d offset:%d' % (TMP + 3, A_K + 4 * h, A_ZSCR + h * 256))
    a('s_waitcnt lgkmcnt(0)')
    a('s_barrier')
    a('s_lshl_b32 s52, s29, 10'); a('s_add_u32 s52, s52, %d' % A_SCR)
    a('v_add_u32 v%d, s52, v%d' % (TMP, TMP))
    a('s_lshl_b32 s52, s29, 8')
    a('v_add_u32 v%d, s52, v%d' % (TMP + 2, TMP + 2))
    for w in range(4):
        a('ds_read_b128 %s, v%d offset:%d' % (vr(KVR + 4 * w, 4), TMP, w * 4096))
        a('ds_read_b32 v%d, v%d offset:%d' % (ZR + w, TMP + 2, A_ZSCR + w * 1024))
    check_init('A', 182)
    vm.q = []
    a('s_waitcnt lgkmcnt(0)')
    for q in range(4):
        a('v_add_f32 v%d, v%d, v%d' % (KVR + q, KVR + q, KVR + 4 + q))
        a('v_add_f32 v%d, v%d, v%d' % (KVR + 8 + q, KVR + 8 + q, KVR + 12 + q))
    a('v_add_f32 v%d, v%d, v%d' % (ZR, ZR, ZR + 1)); a('v_add_f32 v%d, v%d, v%d' % (ZR + 2, ZR + 2, ZR + 3))
    for q in range(4):
        a('v_add_f32 v%d, v%d, v%d' % (KVR + q, KVR + q, KVR + 8 + q))
    a('v_add_f32 v%d, v%d, v%d' % (ZR, ZR, ZR + 2))
    a('v_and_b32 v%d, 15, v1' % TMP); a('v_lshlrev_b32 v%d, 2, v%d' % (TMP, TMP))
    a('v_lshrrev_b32 v%d, 4, v1' % (TMP + 1))
    a('v_lshl_add_u32 v%d, v%d, 8, v%d' % (TMP + 1, TMP + 1, TMP))
    a('s_lshl_b32 s52, s28, 2'); a('s_add_u32 s52, s52, s29'); a('s_mul_i32 s52, s52, %d' % KVS); a('s_add_u32 s52, s52, 0x%x' % KV)
    for q in range(4):
        a('buffer_atomic_add_f32 v%d, v%d, %s, s52 offen offset:%d' % (KVR + q, TMP + 1, srd(SRD_WS), q * 64)); vm.issue('atom')
    a('s_mov_b64 exec, 0xffff')
    a('buffer_atomic_add_f32 v%d, v%d, %s, s52 offen offset:1024' % (ZR, TMP, srd(SRD_WS))); vm.issue('atom')
    a('s_mov_b64 exec, -1')

def a_epi_q(vm):
    QP = 20; TMP = 216; CM = 220; KZ = 36; AOP = 68; D1 = 84; OP = 184
    phi_consts(CM)
    for h in range(4):
        for bb in range(2):
            r = A_Q + (bb * 4 + h) * 4
            for it in phi4(r, CM, TMP): a(it)
            a('v_cvt_pk_bf16_f32 v%d, v%d, v%d' % (QP + 4 * h + 2 * bb, r, r + 1))
            a('v_cvt_pk_bf16_f32 v%d, v%d, v%d' % (QP + 4 * h + 2 * bb + 1, r + 2, r + 3))
        a('v_permlane16_swap_b32 v%d, v%d' % (QP + 4 * h, QP + 4 * h + 2))
        a('v_permlane16_swap_b32 v%d, v%d' % (QP + 4 * h + 1, QP + 4 * h + 3))
    stamp('A_epiq')
    a('s_cmp_eq_u32 s29, 0')
    a('s_cbranch_scc0 L_A_nopoll')
    a('s_lshl_b32 s52, s28, 8')
    a('v_mov_b32 v16, s52')
    spin_wait('v16', S_WS, 16, 'cnt16')
    a.label('L_A_nopoll')
    a('s_barrier')
    stamp('A_sync16')
    a('v_and_b32 v16, 3, v1')
    a('v_bfe_u32 v17, v1, 3, 1')
    a('v_lshl_add_u32 v16, v17, 2, v16')
    a('v_bfe_u32 v17, v1, 2, 1')
    a('v_lshl_add_u32 v16, v17, 3, v16')
    a('v_bfe_u32 v17, v1, 4, 1')
    a('v_cmp_eq_u32 vcc, 1, v17')
    a('v_cndmask_b32_e64 v16, v16, 16, vcc')
    a('v_lshlrev_b32 v16, 6, v16')
    a('v_lshrrev_b32 v17, 5, v1')
    a('v_lshl_add_u32 v16, v17, 5, v16')
    a('s_lshl_b32 s52, s28, 2'); a('s_mul_i32 s52, s52, %d' % KVS); a('s_add_u32 s52, s52, 0x%x' % KV)
    for h in range(4):
        a('s_add_u32 s53, s52, %d' % (h * KVS))
        a('buffer_load_dwordx4 %s, v16, %s, s53 offen sc1' % (vr(KZ + 8 * h, 4), srd(SRD_WS)))
        a('buffer_load_dwordx4 %s, v16, %s, s53 offen offset:16 sc1' % (vr(KZ + 8 * h + 4, 4), srd(SRD_WS)))
    a('s_lshl_b32 s52, s28, 12')
    a('v_lshlrev_b32 v16, 4, v1'); a('v_add_u32 v16, s52, v16')
    a('s_lshl_b32 s53, s27, 17'); a('s_lshl_b32 s54, s29, 15'); a('s_add_u32 s53, s53, s54'); a('s_add_u32 s53, s53, 0x%x' % CH)
    for h in range(4):
        a('s_waitcnt vmcnt(%d)' % (6 - 2 * h))
        for q in range(4):
            a('v_cvt_pk_bf16_f32 v%d, v%d, v%d' % (AOP + 4 * h + q, KZ + 8 * h + 2 * q, KZ + 8 * h + 2 * q + 1))
        a('v_mfma_f32_32x32x16_bf16 %s, %s, %s, 0' % (vr(D1 + 16 * h, 16), vr(AOP + 4 * h, 4), vr(QP + 4 * h, 4)))
    a('s_mov_b32 s58, 0x%x' % fbits(1e-6))
    for h in range(4):
        d = D1 + 16 * h
        a('v_add_f32 v%d, s58, v%d' % (d + 8, d + 8))
        a('v_rcp_f32 v%d, v%d' % (d + 8, d + 8))
        for q in range(4):
            a('v_pk_mul_f32 %s, %s, %s op_sel_hi:[1,0]' % (vr(d + 2 * q, 2), vr(d + 2 * q, 2), vr(d + 8, 2)))
        for q in range(4):
            a('v_cvt_pk_bf16_f32 v%d, v%d, v%d' % (OP + 4 * h + q, d + 2 * q, d + 2 * q + 1))
        a('buffer_store_dwordx4 %s, v16, %s, s53 offen offset:%d sc1' % (vr(OP + 4 * h, 4), srd(SRD_WS), h * 1024))
    stamp('A_o')

def phase2():
    a.label('L_P2')
    a('s_barrier')
    stamp('P2_go')
    make_srd(SRD_OUT, S_OUT, 2048 * 2048)
    a('s_lshl_b32 s52, s26, 4'); a('s_add_u32 s52, s52, s27'); a('s_lshl_b32 s52, s52, 2'); a('s_add_u32 s52, s52, s29')
    a('s_lshl_b32 s52, s52, 15'); a('s_add_u32 s52, s52, 0x%x' % CH)
    a('v_lshlrev_b32 v2, 4, v1')
    for h in range(32):
        if h % 4 == 0 and h: a('s_add_u32 s52, s52, 4096')
        a('buffer_load_dwordx4 %s, v2, %s, s52 offen offset:%d sc1' % (ar(4 * h, 4), srd(SRD_WS), (h % 4) * 1024))
    a('v_lshrrev_b32 v3, 5, v1')
    a('v_lshlrev_b32 v3, 10, v3')
    a('v_bfe_u32 v4, v1, 2, 2')
    a('v_lshl_add_u32 v3, v4, 7, v3')
    a('v_bfe_u32 v4, v1, 4, 1')
    a('v_lshl_add_u32 v3, v4, 5, v3')
    a('v_and_b32 v4, 3, v1')
    a('v_lshl_add_u32 v3, v4, 3, v3')
    a('v_bfe_u32 v4, v1, 3, 1')
    a('v_lshlrev_b32 v4, 6, v4')
    a('v_xor_b32 v3, v3, v4')
    a('v_add_u32 v3, %d, v3' % WO_BASE)
    a('v_xor_b32 v4, 64, v3')
    WF = [20, 28, 36]; ACC = 48
    def reads(h, F):
        return ['ds_read_b64_tr_b16 %s, v%d offset:%d' % (vr(F + 4 * tl + 2 * jj, 2), 3 + tl, h * 2048 + jj * 512)
                for tl in range(2) for jj in range(2)]
    for it in reads(0, WF[0]) + reads(1, WF[1]): a(it)
    for h in range(32):
        F = WF[h % 3]
        nxt = reads(h + 2, WF[(h + 2) % 3]) if h + 2 < 32 else []
        for it in nxt: a(it)
        outstanding = (8 if h + 2 < 32 else (4 if h + 1 < 32 else 0))
        a('s_waitcnt vmcnt(%d) lgkmcnt(%d)' % (31 - h, outstanding))
        for tl in range(2):
            c = vr(ACC + 16 * tl, 16) if h else '0'
            a('v_mfma_f32_32x32x16_bf16 %s, %s, %s, %s' % (vr(ACC + 16 * tl, 16), vr(F + 4 * tl, 4), ar(4 * h, 4), c))
    stamp('P2_gemm')
    PK = 84
    a('v_and_b32 v5, 31, v1')
    a('v_and_b32 v6, 7, v5')
    a('v_lshlrev_b32 v7, 7, v5')
    a('s_lshl_b32 s52, s29, 12')
    a('v_add_u32 v7, s52, v7')
    a('v_lshrrev_b32 v8, 5, v1')
    a('v_lshl_add_u32 v7, v8, 3, v7')
    for tl in range(2):
        for q in range(4):
            d = ACC + 16 * tl + 4 * q; p = PK + 2 * (tl * 4 + q)
            a('v_cvt_pk_bf16_f32 v%d, v%d, v%d' % (p, d, d + 1))
            a('v_cvt_pk_bf16_f32 v%d, v%d, v%d' % (p + 1, d + 2, d + 3))
            a('v_xor_b32 v9, %d, v6' % (tl * 4 + q))
            a('v_lshl_add_u32 v%d, v9, 4, v7' % (10 + (tl * 4 + q) % 2))
            a('ds_write_b64 v%d, %s' % (10 + (tl * 4 + q) % 2, vr(p, 2)))
    a('v_lshrrev_b32 v5, 3, v1')
    a('v_and_b32 v6, 7, v1')
    a('v_xor_b32 v8, v5, v6')
    a('v_lshlrev_b32 v8, 4, v8')
    a('v_lshl_add_u32 v8, v5, 7, v8')
    a('v_add_u32 v8, s52, v8')
    a('v_lshlrev_b32 v9, s75, v5')
    a('v_lshl_add_u32 v9, v6, 4, v9')
    a('s_lshl_b32 s53, s28, 7'); a('s_add_u32 s74, s74, s53')
    a('s_lshl_b32 s54, 8, s75')
    a('s_waitcnt lgkmcnt(0)')
    for it in range(4):
        a('ds_read_b128 %s, v8 offset:%d' % (vr(100 + 4 * it, 4), it * 1024))
    for it in range(4):
        a('s_waitcnt lgkmcnt(%d)' % (3 - it))
        a('buffer_store_dwordx4 %s, v9, %s, s74 offen' % (vr(100 + 4 * it, 4), srd(SRD_OUT)))
        if it < 3: a('s_add_u32 s74, s74, s54')
    if OPT['stamps']:
        a('s_waitcnt vmcnt(0)')
        stamp('end')
        a('s_waitcnt lgkmcnt(0)')
        a('s_lshl_b32 s52, s2, 2'); a('s_add_u32 s52, s52, s29'); a('s_lshl_b32 s52, s52, 7'); a('s_add_u32 s52, s52, 0x%x' % STAMP)
        a('v_lshlrev_b32 v2, 2, v1')
        a('v_mov_b32 v3, 0')
        for i in range(13):
            a('v_cmp_eq_u32 vcc, %d, v1' % i)
            a('v_mov_b32 v4, s%d' % (76 + 2 * i))
            a('v_cndmask_b32 v3, v3, v4, vcc')
        a('s_mov_b64 exec, 0x1fff')
        a('buffer_store_dword v3, v2, %s, s52 offen' % srd(SRD_WS))
    a('s_endpgm')

hdr = open('concat_heads__linear_attn_block__sliding_local_dilated__prompt.s.ref').read().split('\n')
for l in hdr:
    if l.startswith('; @launch'): break
    a(l)
a('; @launch grid=(256,1,1) block=(256,1,1) lds=%d' % LDS_BYTES)
a('.amdgcn_target "amdgcn-amd-amdhsa--gfx950"')
kernel_begin(a, KNAME)
body_start = len(a.lines)
prologue()
base = NSTAMP[0]
a_path()
NSTAMP[0] = base
b_path()
NSTAMP[0] = 10
phase2()
body = fix_hazards(a.lines[body_start:], verbose=True)
a.lines = a.lines[:body_start] + body
kernel_desc(a, KNAME, 384, 102, 256)
open(OPT['out'], 'w').write(a.text())
print('lines', len(a.lines))
```

```python
import sys, struct
from asmlib import *

KNAME = 'concat_heads__linear_attn_block__sliding_local_dilated__prompt_kernel'
OPT = dict(stamps=0, span=0, empty2=0, out='k.s', spin=1 << 20, stop='')
for arg in sys.argv[1:]:
    k, v = arg.split('=')
    OPT[k] = int(v, 0) if k not in ('out', 'stop') else v

def fbits(x): return struct.unpack('<I', struct.pack('<f', x))[0]
LOG2E = 1.4426950408889634
NEG = -1.0e30

CNT16 = 0x0000; CNT8 = 0x1000; KV = 0x4000; KVS = 1280; CH = 0x100000; STAMP = 0x600000
WS_SIZE = 0x800000
NZERO_WG = 16
WO_BASE = 98304
B_SLOT = 43008
A_SLOT = 16384
A_SCR = 81920
A_ZSCR = 32768
LDS_BYTES = 163840

S_AX, S_AW, S_AO, S_BX, S_BW, S_BO, S_OUT, S_DBG, S_WS = 8, 10, 12, 14, 16, 18, 20, 22, 24
sBR, sRB, sHG, sWV = 26, 27, 28, 29
SRD_X, SRD_W, SRD_O, SRD_WS, SRD_OUT = 32, 36, 40, 44, 48
def srd(r): return 's[%d:%d]' % (r, r + 3)
def vr(r, n=1): return 'v%d' % r if n == 1 else 'v[%d:%d]' % (r, r + n - 1)
def ar(r, n=1): return 'a%d' % r if n == 1 else 'a[%d:%d]' % (r, r + n - 1)

a = Asm()
NSTAMP = [0]
def stamp(name):
    if not OPT['stamps']: return
    i = NSTAMP[0]; NSTAMP[0] += 1
    assert i < 13
    a('s_memtime s[%d:%d]   ; stamp %s' % (76 + 2 * i, 77 + 2 * i, name))

class VM:
    def __init__(self): self.q = []
    def issue(self, tag): self.q.append(tag)
    def wait(self, tag):
        idx = max(i for i, t in enumerate(self.q) if t == tag)
        n = len(self.q) - 1 - idx
        assert n <= 63
        a('s_waitcnt vmcnt(%d)   ; %s' % (n, tag))
        self.q = self.q[idx + 1:]
        return n
    def all(self):
        a('s_waitcnt vmcnt(0)'); self.q = []

def make_srd(r, sp, size):
    a('s_mov_b32 s%d, s%d' % (r, sp)); a('s_mov_b32 s%d, s%d' % (r + 1, sp + 1))
    a('s_mov_b32 s%d, 0x%x' % (r + 2, size)); a('s_mov_b32 s%d, 0x20000' % (r + 3))

def interleave(main, extra, start=0, every=1):
    extra = list(extra); k = 0
    for i, m in enumerate(main):
        a(m)
        if i >= start and (i - start) % every == 0 and extra:
            a(extra.pop(0))
    for e in extra: a(e)

def spin_wait(vaddr_setup, base, cmp_lit, name, vd=17):
    L = 'L_spin_' + name; D = 'L_spun_' + name
    a('s_mov_b32 s56, 0')
    a.label(L)
    a('global_load_dword v%d, %s, s[%d:%d] sc1' % (vd, vaddr_setup, base, base + 1))
    a('s_waitcnt vmcnt(0)')
    a('v_readfirstlane_b32 s57, v%d' % vd)
    a('s_add_u32 s56, s56, 1')
    a('s_cmp_ge_u32 s56, 0x%x' % OPT['spin'])
    a('s_cbranch_scc1 %s' % D)
    a('s_cmp_lt_u32 s57, %d' % cmp_lit)
    a('s_cbranch_scc1 %s' % L)
    a.label(D)

def prologue():
    a('s_cmp_ge_u32 s2, 256')
    a('s_cbranch_scc0 L_go')
    a('s_endpgm')
    a.label('L_go')
    a('s_load_dwordx16 s[8:23], s[0:1], 0')
    a('s_load_dwordx2 s[24:25], s[0:1], 64')
    stamp('start')
    if OPT['span']:
        a('s_memrealtime s[96:97]')
        a('s_memtime s[98:99]')
    a('v_and_b32 v1, 63, v0')
    a('v_lshrrev_b32 v2, 6, v0')
    a('s_lshr_b32 s26, s2, 2')
    a('v_readfirstlane_b32 s29, v2')
    a('s_and_b32 s26, s26, 1')
    a('s_and_b32 s52, s2, 3')
    a('s_lshr_b32 s53, s2, 3')
    a('s_lshr_b32 s27, s53, 3')
    a('s_lshl_b32 s52, s52, 2')
    a('s_add_u32 s27, s27, s52')
    a('s_and_b32 s28, s53, 7')
    a('v_lshrrev_b32 v16, 3, v1')
    a('s_lshl_b32 s52, s29, 4')
    a('v_add_u32 v17, s52, v16')
    a('v_mul_u32_u24 v17, 3072, v17')
    a('v_lshrrev_b32 v18, 4, v1')
    a('v_and_b32 v19, 1, v18')
    a('v_lshlrev_b32 v19, 1, v19')
    a('v_and_b32 v20, 7, v1')
    a('v_xor_b32 v19, v19, v20')
    a('v_lshlrev_b32 v19, 4, v19')
    a('s_lshl_b32 s52, s28, 7')
    a('v_add3_u32 v7, v17, v19, s52')
    a('v_xor_b32 v8, 64, v7')
    a('v_add_u32 v8, %d, v8' % (8 * 3072))
    a('v_lshlrev_b32 v9, 10, v18')
    a('v_bfe_u32 v21, v1, 2, 2')
    a('v_lshl_add_u32 v9, v21, 7, v9')
    a('v_and_b32 v21, 3, v1')
    a('v_lshl_add_u32 v9, v21, 3, v9')
    a('v_bfe_u32 v21, v1, 3, 2')
    a('v_lshl_add_u32 v9, v21, 5, v9')
    a('s_waitcnt lgkmcnt(0)')
    make_srd(SRD_WS, S_WS, WS_SIZE)
    a('s_cmp_ge_u32 s2, %d' % NZERO_WG)
    a('s_cbranch_scc1 L_nozero')
    a('v_mov_b32 v24, 0'); a('v_mov_b32 v25, 0'); a('v_mov_b32 v26, 0'); a('v_mov_b32 v27, 0')
    a('v_lshlrev_b32 v22, 4, v1')
    a('s_lshl_b32 s52, s2, 12')
    a('s_lshl_b32 s53, s29, 10')
    a('s_add_u32 s52, s52, s53')
    a('buffer_store_dwordx4 v[24:27], v22, %s, s52 offen sc1' % srd(SRD_WS))
    a.label('L_nozero')
    a('s_cmp_eq_u32 s26, 0')
    a('s_cbranch_scc0 L_B')

def zero_signal(vm_after):
    L = a.newlabel('L_nosig')
    a('s_cmp_ge_u32 s2, %d' % NZERO_WG)
    a('s_cbranch_scc1 %s' % L)
    a('s_waitcnt vmcnt(%d)' % vm_after)
    a('s_barrier')
    a('s_cmp_eq_u32 s29, 0')
    a('s_cbranch_scc0 %s' % L)
    a('v_mov_b32 v22, 0'); a('v_mov_b32 v23, 1')
    a('s_mov_b64 exec, 1')
    a('global_atomic_add v22, v23, s[%d:%d] sc1' % (S_DBG, S_DBG + 1))
    a('s_mov_b64 exec, -1')
    a.label(L)

def check_init(name, va=16):
    a('v_mov_b32 v%d, 0' % va)
    spin_wait('v%d' % va, S_DBG, NZERO_WG, name, vd=va + 1)

def wo_dma_setup():
    pass

def wo_dma_list(lo, hi, voff, stmp):
    L = []
    for ii in range(lo, hi):
        L.append('s_add_u32 m0, s70, 0x%x\ns_mov_b32 s%d, 0x%x\nbuffer_load_dwordx4 v%d, %s, s%d offen lds' %
                 (ii * 1024, stmp, ii * 8192, voff, srd(SRD_O), stmp))
    return L

def wo_voff(vdst, vt):
    a('v_lshrrev_b32 v%d, 3, v1' % vt)
    a('s_lshl_b32 s52, s29, 7')
    a('v_add_u32 v%d, s52, v%d' % (vt, vt))
    a('v_lshlrev_b32 v%d, 10, v%d' % (vt, vt))
    a('v_bfe_u32 v%d, v1, 4, 1' % (vt + 1))
    a('v_lshlrev_b32 v%d, 2, v%d' % (vt + 1, vt + 1))
    a('v_and_b32 v%d, 7, v1' % (vt + 2))
    a('v_xor_b32 v%d, v%d, v%d' % (vt + 1, vt + 1, vt + 2))
    a('v_lshlrev_b32 v%d, 4, v%d' % (vt + 1, vt + 1))
    a('s_lshl_b32 s52, s28, 7')
    a('v_add3_u32 v%d, v%d, v%d, s52' % (vdst, vt, vt + 1))
    a('s_lshl_b32 s70, s29, 14')
    a('s_add_u32 s70, s70, 0x%x' % WO_BASE)

def publish_signal(br):
    a('s_waitcnt vmcnt(0)')
    a('s_barrier')
    stamp('published')
    a('s_lshl_b32 s59, s27, 8')
    a('s_add_u32 s59, s59, 0x%x' % (CNT8 + br * 16 * 256))
    a('s_cmp_eq_u32 s29, 0')
    a('s_cbranch_scc0 L_pub_%d' % br)
    a('v_mov_b32 v16, s59'); a('v_mov_b32 v18, 1')
    a('s_mov_b64 exec, 1')
    a('global_atomic_add v16, v18, s[%d:%d] sc1' % (S_WS, S_WS + 1))
    a('s_mov_b64 exec, -1')
    spin_wait('v16', S_WS, 8, 'cnt8_%d' % br)
    a.label('L_pub_%d' % br)

B_F = [dict(x=20, w=56), dict(x=68, w=104)]
B_Q, B_K, B_V = 116, 148, 184
B_CPREV, B_CCUR, B_CH0, B_CH1, B_ONES = 220, 224, 228, 232, 236

def b_dma(slot_expr_x, slot_expr_h, slot_expr_w, lit=None):
    L = []
    lit = lit or 0
    for seg in (1, 2, 0):
        for ii in range(2):
            L.append('s_add_u32 m0, %s, 0x%x\nbuffer_load_dwordx4 v%d, %s, s%d offen lds' %
                     (slot_expr_w, lit + seg * 8192 + ii * 1024, 7 + ii, srd(SRD_W), 61 + seg))
    for ii in range(4):
        L.append('s_add_u32 m0, %s, 0x%x\nbuffer_load_dwordx4 v%d, %s, s60 offen lds' %
                 (slot_expr_x, lit + ii * 1024, 2 + ii, srd(SRD_X)))
    L.append('s_add_u32 m0, %s, 0x%x\ns_mov_b64 exec, 0xffffffff\nbuffer_load_dwordx4 v6, %s, s60 offen lds\ns_mov_b64 exec, -1' %
             (slot_expr_h, lit, srd(SRD_X)))
    return L

def b_dma_advance():
    return ['s_add_u32 s60, s60, 128\ns_add_u32 s61, s61, 0x30000', 's_add_u32 s62, s62, 0x30000\ns_add_u32 s63, s63, 0x30000']

def b_reads(F, vx, vw, kk):
    L = []
    for seg in range(3):
        for jj in range(2):
            L.append('ds_read_b64_tr_b16 %s, v%d offset:%d' % (vr(F['w'] + seg * 4 + jj * 2, 2), vw, seg * 8192 + kk * 4096 + jj * 512))
    for t in range(9):
        L.append('ds_read_b128 %s, v%d offset:%d' % (vr(F['x'] + 4 * t, 4), vx, t * 2048))
    return L

def b_mfmas(F):
    L = []
    for t in range(9):
        x = vr(F['x'] + 4 * t, 4)
        if t < 8:
            L.append('v_mfma_f32_16x16x32_bf16 %s, %s, %s, %s' % (vr(B_Q + 4 * t, 4), vr(F['w'], 4), x, vr(B_Q + 4 * t, 4)))
        L.append('v_mfma_f32_16x16x32_bf16 %s, %s, %s, %s' % (vr(B_K + 4 * t, 4), vr(F['w'] + 4, 4), x, vr(B_K + 4 * t, 4)))
        L.append('v_mfma_f32_16x16x32_bf16 %s, %s, %s, %s' % (vr(B_V + 4 * t, 4), x, vr(F['w'] + 8, 4), vr(B_V + 4 * t, 4)))
    return L

def b_stage(dma, vmn, last=False, extra1=None):
    a('v_add_u32 v13, s64, v11')
    a('v_add_u32 v14, s64, v12')
    if not last:
        a('v_add_u32 v15, s65, v10')
        a('v_add_u32 v16, s65, v12')
    if dma:
        a('s_add_u32 s66, s64, s71'); a('s_add_u32 s67, s64, s72'); a('s_add_u32 s68, s64, s73')
    interleave(b_mfmas(B_F[0]), b_reads(B_F[1], 13, 14, 1), start=0, every=1)
    a('s_waitcnt lgkmcnt(0)')
    if vmn is not None: a('s_waitcnt vmcnt(%d)' % vmn)
    a('s_barrier')
    ex = []
    if not last: ex += b_reads(B_F[0], 15, 16, 0)
    if dma: ex += b_dma('s66', 's67', 's68') + b_dma_advance()
    if extra1: ex += extra1
    interleave(b_mfmas(B_F[1]), ex, start=0, every=1)
    if not last:
        a('s_waitcnt lgkmcnt(0)')
        a('s_mov_b32 s64, s65')
        a('s_add_u32 s65, s65, %d' % B_SLOT)
        a('s_cmp_eq_u32 s65, %d' % (3 * B_SLOT))
        a('s_cselect_b32 s65, 0, s65')

def b_path():
    a.label('L_B')
    make_srd(SRD_X, S_BX, 2048 * 1024)
    make_srd(SRD_W, S_BW, 512 * 3072)
    make_srd(SRD_O, S_BO, 512 * 1024)
    a('s_lshl_b32 s52, s27, 7')
    a('s_and_b32 s53, s29, 1')
    a('s_lshr_b32 s54, s29, 1')
    a('s_lshl_b32 s55, s53, 6')
    a('s_add_u32 s55, s55, s54')
    a('s_add_u32 s55, s55, s52')
    a('s_lshl_b32 s55, s55, 10')
    a('v_lshlrev_b32 v17, 11, v16')
    a('v_xor_b32 v19, v20, v18')
    a('v_lshlrev_b32 v19, 4, v19')
    a('v_add3_u32 v2, v17, v19, s55')
    a('v_xor_b32 v3, 64, v2')
    a('v_add_u32 v4, 32768, v2')
    a('v_add_u32 v5, 49152, v3')
    a('v_add_u32 v3, 16384, v3')
    a('s_lshl_b32 s55, s53, 3')
    a('s_add_u32 s55, s55, s54')
    a('s_add_u32 s55, s55, s52')
    a('s_sub_u32 s55, s55, 16')
    a('s_lshl_b32 s55, s55, 10')
    a('s_lshl_b32 s56, s29, 1')
    a('v_add_u32 v19, s56, v18')
    a('v_and_b32 v19, 7, v19')
    a('v_xor_b32 v19, v19, v20')
    a('v_lshlrev_b32 v19, 4, v19')
    a('v_add3_u32 v6, v17, v19, s55')
    a('s_lshl_b32 s71, s29, 12')
    a('s_lshl_b32 s72, s29, 9'); a('s_add_u32 s72, s72, 16384')
    a('s_lshl_b32 s73, s29, 11'); a('s_add_u32 s73, s73, 18432')
    a('s_mov_b32 s60, 0'); a('s_mov_b32 s61, 0'); a('s_mov_b32 s62, 1024'); a('s_mov_b32 s63, 2048')
    for st in range(3):
        for it in b_dma('s71', 's72', 's73', lit=st * B_SLOT): a(it)
        for it in b_dma_advance(): a(it)
    stamp('B_issued')
    zero_signal(33)
    a('v_and_b32 v21, 15, v1')
    a('v_lshlrev_b32 v10, 7, v21')
    a('v_bfe_u32 v22, v1, 1, 3')
    a('v_xor_b32 v22, v22, v18')
    a('v_lshl_add_u32 v10, v22, 4, v10')
    a('v_xor_b32 v11, 64, v10')
    a('s_lshl_b32 s52, s29, 5')
    a('v_xor_b32 v12, s52, v9')
    a('v_add_u32 v12, 18432, v12')
    for r in range(B_Q, B_V + 36): a('v_mov_b32 v%d, 0' % r)
    a('s_mov_b32 s52, 0x%x' % fbits(NEG))
    a('s_cmp_eq_u32 s27, 0')
    a('s_cselect_b32 s53, s52, 0')
    a('v_mov_b32 v22, s52')
    a('v_lshlrev_b32 v23, 2, v18')
    for r in range(4):
        a('v_add_u32 v24, %d, v23' % r)
        a('v_sub_u32 v25, v24, v21')
        a('v_cmp_le_i32 vcc, 9, v25')
        a('v_cndmask_b32_e64 v%d, v22, 0, vcc' % (B_CPREV + r))
        a('v_sub_u32 v26, v21, v24')
        a('v_cmp_ge_u32 vcc, 7, v26')
        a('v_cndmask_b32_e64 v%d, v22, 0, vcc' % (B_CCUR + r))
        a('v_cmp_le_i32 vcc, 1, v25')
        a('v_cmp_ge_u32 s[54:55], 7, v24')
        a('s_and_b64 vcc, vcc, s[54:55]')
        a('v_cndmask_b32_e64 v%d, v22, 0, vcc' % (B_CH0 + r))
        a('v_min_f32 v%d, s53, v%d' % (B_CH0 + r, B_CH0 + r))
        a('v_min_f32 v%d, s53, v%d' % (B_CH1 + r, B_CPREV + r))
        a('v_mov_b32 v%d, 0x3f803f80' % (B_ONES + r))
    wo_voff(17, 24)
    a('s_mov_b32 s64, 0'); a('s_mov_b32 s65, %d' % B_SLOT)
    a('s_waitcnt vmcnt(22)')
    a('s_barrier')
    stamp('B_first')
    for it in b_reads(B_F[0], 10, 12, 0): a(it)
    a('s_waitcnt lgkmcnt(0)')
    a('s_mov_b32 s69, 0')
    a.label('L_Bloop')
    b_stage(True, 11)
    a('s_add_u32 s69, s69, 1')
    a('s_cmp_lt_u32 s69, 5')
    a('s_cbranch_scc1 L_Bloop')
    b_stage(False, 11)
    b_stage(False, 0)
    b_stage(False, None, last=True, extra1=wo_dma_list(0, 16, 17, 52))
    stamp('B_gemm')
    b_attention()
    a('s_lshl_b32 s52, s27, 7')
    a('s_and_b32 s53, s29, 1'); a('s_lshl_b32 s53, s53, 6')
    a('s_lshr_b32 s54, s29, 1')
    a('s_add_u32 s52, s52, s53'); a('s_add_u32 s52, s52, s54')
    a('s_lshl_b32 s74, s52, 11'); a('s_add_u32 s74, s74, 1024')
    a('s_mov_b32 s75, 12')
    publish_signal(1)

def b_attention():
    QP, KP, LV = 20, 36, (54, 64)
    S = 116; MX = 180; T = 188; P = 74; OP = 20
    for t in range(8):
        a('v_cvt_pk_bf16_f32 v%d, v%d, v%d' % (QP + 2 * t, B_Q + 4 * t, B_Q + 4 * t + 1))
        a('v_cvt_pk_bf16_f32 v%d, v%d, v%d' % (QP + 2 * t + 1, B_Q + 4 * t + 2, B_Q + 4 * t + 3))
    for t in range(9):
        a('v_cvt_pk_bf16_f32 v%d, v%d, v%d' % (KP + 2 * t, B_K + 4 * t, B_K + 4 * t + 1))
        a('v_cvt_pk_bf16_f32 v%d, v%d, v%d' % (KP + 2 * t + 1, B_K + 4 * t + 2, B_K + 4 * t + 3))
    for p in range(2):
        for k, t in enumerate([8] + [4 * p + b for b in range(4)]):
            a('v_cvt_pk_bf16_f32 v%d, v%d, v%d' % (LV[p] + 2 * k, B_V + 4 * t, B_V + 4 * t + 1))
            a('v_cvt_pk_bf16_f32 v%d, v%d, v%d' % (LV[p] + 2 * k + 1, B_V + 4 * t + 2, B_V + 4 * t + 3))
    for t in range(8):
        b = t & 3; p = t >> 2
        prev = t - 1 if b > 0 else 8
        cm = B_CPREV if b > 0 else (B_CH0 if p == 0 else B_CH1)
        a('v_mfma_f32_16x16x16_bf16 %s, %s, %s, %s' % (vr(S + 8 * t, 4), vr(KP + 2 * prev, 2), vr(QP + 2 * t, 2), vr(cm, 4)))
        a('v_mfma_f32_16x16x16_bf16 %s, %s, %s, %s' % (vr(S + 8 * t + 4, 4), vr(KP + 2 * t, 2), vr(QP + 2 * t, 2), vr(B_CCUR, 4)))
    for t in range(8):
        s = S + 8 * t
        a('v_max3_f32 v%d, v%d, v%d, v%d' % (MX + t, s, s + 1, s + 2))
        a('v_max3_f32 v%d, v%d, v%d, v%d' % (T + t, s + 3, s + 4, s + 5))
        a('v_max3_f32 v%d, v%d, v%d, v%d' % (MX + t, MX + t, s + 6, s + 7))
        a('v_max_f32 v%d, v%d, v%d' % (MX + t, MX + t, T + t))
    a('s_mov_b32 s52, 0x%x' % fbits(0.25 * LOG2E))
    a('s_mov_b32 s53, s52')
    def batch(m, tmp):
        A_, B_, C_, D_ = m, m + 1, m + 2, m + 3
        h = tmp
        return ['v_permlane16_swap_b32 v%d, v%d' % (A_, B_),
                'v_permlane16_swap_b32 v%d, v%d' % (C_, D_),
                'v_max_f32 v%d, v%d, v%d' % (A_, A_, B_),
                'v_max_f32 v%d, v%d, v%d' % (C_, C_, D_),
                'v_permlane32_swap_b32 v%d, v%d' % (A_, C_),
                'v_max_f32 v%d, v%d, v%d' % (A_, A_, C_),
                'v_mul_f32 v%d, s52, v%d' % (A_, A_),
                'v_mov_b32 v%d, v%d' % (C_, A_),
                'v_permlane32_swap_b32 v%d, v%d' % (A_, C_),
                'v_mov_b32 v%d, v%d' % (B_, A_),
                'v_mov_b32 v%d, v%d' % (D_, C_),
                'v_permlane16_swap_b32 v%d, v%d' % (A_, B_),
                'v_permlane16_swap_b32 v%d, v%d' % (C_, D_)]
    b0 = batch(MX, T); b1 = batch(MX + 4, T + 4)
    for x, y in zip(b0, b1):
        a(x); a(y)
    for t in range(8):
        s = S + 8 * t
        mreg = MX + (t & ~1); sel = t & 1
        for q in range(4):
            a('v_pk_fma_f32 %s, %s, s[52:53], %s op_sel:[0,0,%d] op_sel_hi:[1,1,%d] neg_lo:[0,0,1] neg_hi:[0,0,1]' %
              (vr(s + 2 * q, 2), vr(s + 2 * q, 2), vr(mreg, 2), sel, sel))
        for q in range(8):
            a('v_exp_f32 v%d, v%d' % (s + q, s + q))
        for q in range(4):
            a('v_cvt_pk_bf16_f32 v%d, v%d, v%d' % (P + 4 * t + q, s + 2 * q, s + 2 * q + 1))
    for t in range(8):
        b = t & 3; p = t >> 2
        a('v_mfma_f32_16x16x32_bf16 %s, %s, %s, 0' % (vr(S + 8 * t, 4), vr(LV[p] + 2 * b, 4), vr(P + 4 * t, 4)))
        a('v_mfma_f32_16x16x32_bf16 %s, %s, %s, 0' % (vr(S + 8 * t + 4, 4), vr(B_ONES, 4), vr(P + 4 * t, 4)))
    a('s_lshl_b32 s52, s28, 2'); a('s_add_u32 s52, s52, s29'); a('s_lshl_b32 s52, s52, 10')
    a('v_lshlrev_b32 v16, 4, v1'); a('v_add_u32 v16, s52, v16')
    a('s_add_u32 s53, s27, 16'); a('s_lshl_b32 s53, s53, 17'); a('s_add_u32 s53, s53, 0x%x' % CH)
    for pr in range(4):
        for u in range(2):
            t = 2 * pr + u; s = S + 8 * t
            a('v_rcp_f32 v%d, v%d' % (s + 4, s + 4))
        for u in range(2):
            t = 2 * pr + u; s = S + 8 * t
            a('v_pk_mul_f32 %s, %s, %s op_sel_hi:[1,0]' % (vr(s, 2), vr(s, 2), vr(s + 4, 2)))
            a('v_pk_mul_f32 %s, %s, %s op_sel_hi:[1,0]' % (vr(s + 2, 2), vr(s + 2, 2), vr(s + 4, 2)))
            a('v_cvt_pk_bf16_f32 v%d, v%d, v%d' % (OP + 4 * pr + 2 * u, s, s + 1))
            a('v_cvt_pk_bf16_f32 v%d, v%d, v%d' % (OP + 4 * pr + 2 * u + 1, s + 2, s + 3))
        a('v_permlane16_swap_b32 v%d, v%d' % (OP + 4 * pr, OP + 4 * pr + 2))
        a('v_permlane16_swap_b32 v%d, v%d' % (OP + 4 * pr + 1, OP + 4 * pr + 3))
        a('s_add_u32 s54, s53, 0x%x' % (pr * 32768))
        a('buffer_store_dwordx4 %s, v16, %s, s54 offen sc1' % (vr(OP + 4 * pr, 4), srd(SRD_WS)))
    stamp('B_att')
    check_init('B')

A_F = [20, 52]
A_K, A_V, A_Q = 84, 116, 148
def a_xreg(ks, bb): return (ks * 2 + bb) * 4

def a_units(st):
    if st < 8: return [(1, st), (2, st)]
    q = st - 8
    return [(0, 2 * q), (0, 2 * q + 1)]

def a_dma(st):
    L = []
    slot = (st % 5) * A_SLOT
    for u, (seg, c) in enumerate(a_units(st)):
        for ii in range(2):
            L.append('s_add_u32 m0, s71, 0x%x\ns_mov_b32 s%d, 0x%x\nbuffer_load_dwordx4 v%d, %s, s%d offen lds' %
                     (slot + u * 8192 + ii * 1024, 52 + ii, c * 196608 + seg * 1024, 7 + ii, srd(SRD_W), 52 + ii))
    return L

def a_base(hh, off):
    if off >= 65536 - 13000: return 14 + hh, off - 65536 + 0
    return 10 + hh, off

def a_reads(F, st, step):
    L = []
    slot = (st % 5) * A_SLOT
    for f in range(8):
        hh = f & 3; hi = f >> 2
        if st < 8: u, kk = hi, step
        else: u, kk = step, hi
        for jj in range(2):
            off = slot + u * 8192 + kk * 4096 + jj * 512
            if slot >= 4 * A_SLOT: v, imm = 16 + 0, 0; v = 14 + hh; imm = off - 65536
            else: v = 10 + hh; imm = off
            assert 0 <= imm < 65536
            L.append('ds_read_b64_tr_b16 %s, v%d offset:%d' % (vr(F + 4 * f + 2 * jj, 2), v, imm))
    return L

def a_mfmas(F, st, step):
    L = []
    for f in range(8):
        hh = f & 3; hi = f >> 2
        for bb in range(2):
            w = vr(F + 4 * f, 4)
            if st < 8:
                ks = 2 * st + step
                x = ar(a_xreg(ks, bb), 4)
                acc = (A_K if hi == 0 else A_V) + (bb * 4 + hh) * 4
                L.append('v_mfma_f32_16x16x32_bf16 %s, %s, %s, %s' % (vr(acc, 4), x, w, vr(acc, 4)))
            else:
                c = 2 * (st - 8) + step
                ks = 2 * c + hi
                x = ar(a_xreg(ks, bb), 4)
                acc = A_Q + (bb * 4 + hh) * 4
                L.append('v_mfma_f32_16x16x32_bf16 %s, %s, %s, %s' % (vr(acc, 4), w, x, vr(acc, 4)))
    return L

def phi4(r, cm, tmp):
    L = []
    for q in range(2):
        L.append('v_pk_fma_f32 %s, %s, s[54:55], %s' % (vr(tmp + 2 * q, 2), vr(r + 2 * q, 2), vr(cm, 2)))
    for q in range(4):
        L.append('v_exp_f32_e64 v%d, v%d clamp' % (tmp + q, tmp + q))
    for q in range(4):
        L.append('v_max_f32 v%d, s58, v%d' % (r + q, r + q))
    for q in range(2):
        L.append('v_pk_add_f32 %s, %s, %s' % (vr(r + 2 * q, 2), vr(r + 2 * q, 2), vr(tmp + 2 * q, 2)))
    return L

def phi_consts(cm):
    a('s_mov_b32 s54, 0x%x' % fbits(LOG2E)); a('s_mov_b32 s55, s54')
    a('s_mov_b32 s58, 0x%x' % fbits(1e-6))
    a('v_mov_b32 v%d, 0x%x' % (cm, fbits(-1e-6 * LOG2E))); a('v_mov_b32 v%d, 0x%x' % (cm + 1, fbits(-1e-6 * LOG2E)))

def a_path():
    vm = VM()
    make_srd(SRD_X, S_AX, 2048 * 1024)
    make_srd(SRD_W, S_AW, 512 * 3072)
    make_srd(SRD_O, S_AO, 512 * 1024)
    a('s_lshl_b32 s52, s27, 7'); a('s_lshl_b32 s53, s29, 5'); a('s_add_u32 s52, s52, s53')
    a('v_and_b32 v21, 15, v1')
    a('v_add_u32 v2, s52, v21')
    a('v_lshlrev_b32 v2, 10, v2')
    a('v_lshl_add_u32 v2, v18, 4, v2')
    a('s_mov_b32 s60, 16384')
    a('s_lshl_b32 s71, s29, 11')
    def xload(ks):
        for bb in range(2):
            a('buffer_load_dwordx4 %s, v2, %s, %s offen offset:%d' % (ar(a_xreg(ks, bb), 4), srd(SRD_X), 's60' if bb else '0', ks * 64))
            vm.issue('x%d' % ks)
    for st in range(5):
        xload(2 * st); xload(2 * st + 1)
        for it in a_dma(st): a(it); vm.issue('W%d' % st)
    for ks in range(10, 16): xload(ks)
    stamp('A_issued')
    zero_signal(52)
    for hh in range(4):
        a('v_xor_b32 v%d, %d, v9' % (10 + hh, hh << 5))
        a('v_add_u32 v%d, 0x10000, v%d' % (14 + hh, 10 + hh))
    for r in range(A_K, A_K + 32): a('v_mov_b32 v%d, 0x%x' % (r, fbits(1e-6)))
    for r in range(A_V, A_V + 32): a('v_mov_b32 v%d, 0' % r)
    for r in range(A_Q, A_Q + 32): a('v_mov_b32 v%d, 0x%x' % (r, fbits(1e-6)))
    wo_voff(19, 180)
    a('v_mov_b32 v6, v19')
    vm.wait('W0')
    a('s_barrier')
    stamp('A_first')
    for it in a_reads(A_F[0], 0, 0): a(it)
    a('s_waitcnt lgkmcnt(0)')
    for st in range(12):
        interleave(a_mfmas(A_F[0], st, 0), a_reads(A_F[1], st, 1))
        a('s_waitcnt lgkmcnt(0)')
        if st + 1 <= 11: vm.wait('W%d' % (st + 1)) if ('W%d' % (st + 1)) in vm.q else None
        if st == 10:
            vm.wait('atom')
        a('s_barrier')
        if st == 10:
            a('s_cmp_eq_u32 s29, 0')
            a('s_cbranch_scc0 L_A_nosig16')
            a('s_lshl_b32 s52, s28, 8')
            a('v_mov_b32 v180, s52'); a('v_mov_b32 v181, 1')
            a('s_mov_b64 exec, 1')
            a('global_atomic_add v180, v181, s[%d:%d] sc1' % (S_WS, S_WS + 1))
            a('s_mov_b64 exec, -1')
            a.label('L_A_nosig16')
        ex = []
        if st + 1 <= 11: ex += a_reads(A_F[0], st + 1, 0)
        dm = []
        if st + 5 <= 11:
            dm = a_dma(st + 5); tag = 'W%d' % (st + 5)
        elif st <= 10:
            k = st - 7
            dm = wo_dma_list(4 * k, 4 * k + 4, 6, 52); tag = 'wo'
        m = a_mfmas(A_F[1], st, 1)
        ex2 = list(ex)
        seq = []
        for i, mm in enumerate(m):
            seq.append(mm)
            if ex2: seq.append(ex2.pop(0))
            if dm and i % 4 == 3:
                seq.append(dm.pop(0)); vm.issue(tag)
        for it in seq: a(it)
        for it in ex2: a(it)
        a('s_waitcnt lgkmcnt(0)')
        if st == 7:
            stamp('A_pass1')
            a_epi_k(vm)
            stamp('A_epik')
    stamp('A_pass2')
    a_epi_q(vm)
    a('s_lshl_b32 s52, s27, 7'); a('s_lshl_b32 s53, s29, 5'); a('s_add_u32 s52, s52, s53')
    a('s_lshl_b32 s74, s52, 11')
    a('s_mov_b32 s75, 11')
    publish_signal(0)
    a('s_branch L_P2')

def a_epi_k(vm):
    KP, VP = 184, 200
    TMP = 216; CM = 220; ONES = 224; KVR = 228; ZR = 244
    phi_consts(CM)
    for q in range(4): a('v_mov_b32 v%d, 0x3f803f80' % (ONES + q))
    for h in range(4):
        for bb in range(2):
            r = A_K + (bb * 4 + h) * 4
            for it in phi4(r, CM, TMP): a(it)
            a('v_cvt_pk_bf16_f32 v%d, v%d, v%d' % (KP + 4 * h + 2 * bb, r, r + 1))
            a('v_cvt_pk_bf16_f32 v%d, v%d, v%d' % (KP + 4 * h + 2 * bb + 1, r + 2, r + 3))
            r = A_V + (bb * 4 + h) * 4
            a('v_cvt_pk_bf16_f32 v%d, v%d, v%d' % (VP + 4 * h + 2 * bb, r, r + 1))
            a('v_cvt_pk_bf16_f32 v%d, v%d, v%d' % (VP + 4 * h + 2 * bb + 1, r + 2, r + 3))
    for h in range(4):
        a('v_mfma_f32_16x16x32_bf16 %s, %s, %s, 0' % (vr(A_V + 4 * h, 4), vr(VP + 4 * h, 4), vr(KP + 4 * h, 4)))
        a('v_mfma_f32_16x16x32_bf16 %s, %s, %s, 0' % (vr(A_K + 4 * h, 4), vr(ONES, 4), vr(KP + 4 * h, 4)))
    a('v_lshlrev_b32 v%d, 4, v1' % TMP)
    a('s_lshl_b32 s52, s29, 12')
    a('v_add_u32 v%d, s52, v%d' % (TMP + 1, TMP))
    a('v_lshlrev_b32 v%d, 2, v1' % (TMP + 2))
    a('s_lshl_b32 s52, s29, 10')
    a('v_add_u32 v%d, s52, v%d' % (TMP + 3, TMP + 2))
    a('v_add_u32 v%d, %d, v%d' % (TMP + 1, A_SCR, TMP + 1))
    for h in range(4):
        a('ds_write_b128 v%d, %s offset:%d' % (TMP + 1, vr(A_V + 4 * h, 4), h * 1024))
        a('ds_write_b32 v%d, v%d offset:%d' % (TMP + 3, A_K + 4 * h, A_ZSCR + h * 256))
    a('s_waitcnt lgkmcnt(0)')
    a('s_barrier')
    a('s_lshl_b32 s52, s29, 10'); a('s_add_u32 s52, s52, %d' % A_SCR)
    a('v_add_u32 v%d, s52, v%d' % (TMP, TMP))
    a('s_lshl_b32 s52, s29, 8')
    a('v_add_u32 v%d, s52, v%d' % (TMP + 2, TMP + 2))
    for w in range(4):
        a('ds_read_b128 %s, v%d offset:%d' % (vr(KVR + 4 * w, 4), TMP, w * 4096))
        a('ds_read_b32 v%d, v%d offset:%d' % (ZR + w, TMP + 2, A_ZSCR + w * 1024))
    check_init('A', 182)
    vm.q = []
    a('s_waitcnt lgkmcnt(0)')
    for q in range(4):
        a('v_add_f32 v%d, v%d, v%d' % (KVR + q, KVR + q, KVR + 4 + q))
        a('v_add_f32 v%d, v%d, v%d' % (KVR + 8 + q, KVR + 8 + q, KVR + 12 + q))
    a('v_add_f32 v%d, v%d, v%d' % (ZR, ZR, ZR + 1)); a('v_add_f32 v%d, v%d, v%d' % (ZR + 2, ZR + 2, ZR + 3))
    for q in range(4):
        a('v_add_f32 v%d, v%d, v%d' % (KVR + q, KVR + q, KVR + 8 + q))
    a('v_add_f32 v%d, v%d, v%d' % (ZR, ZR, ZR + 2))
    a('v_and_b32 v%d, 15, v1' % TMP); a('v_lshlrev_b32 v%d, 2, v%d' % (TMP, TMP))
    a('v_lshrrev_b32 v%d, 4, v1' % (TMP + 1))
    a('v_lshl_add_u32 v%d, v%d, 8, v%d' % (TMP + 1, TMP + 1, TMP))
    a('s_lshl_b32 s52, s28, 2'); a('s_add_u32 s52, s52, s29'); a('s_mul_i32 s52, s52, %d' % KVS); a('s_add_u32 s52, s52, 0x%x' % KV)
    for q in range(4):
        a('buffer_atomic_add_f32 v%d, v%d, %s, s52 offen offset:%d' % (KVR + q, TMP + 1, srd(SRD_WS), q * 64)); vm.issue('atom')
    a('s_mov_b64 exec, 0xffff')
    a('buffer_atomic_add_f32 v%d, v%d, %s, s52 offen offset:1024' % (ZR, TMP, srd(SRD_WS))); vm.issue('atom')
    a('s_mov_b64 exec, -1')

def a_epi_q(vm):
    QP = 20; TMP = 216; CM = 220; KZ = 36; AOP = 68; D1 = 84; OP = 184
    phi_consts(CM)
    for h in range(4):
        for bb in range(2):
            r = A_Q + (bb * 4 + h) * 4
            for it in phi4(r, CM, TMP): a(it)
            a('v_cvt_pk_bf16_f32 v%d, v%d, v%d' % (QP + 4 * h + 2 * bb, r, r + 1))
            a('v_cvt_pk_bf16_f32 v%d, v%d, v%d' % (QP + 4 * h + 2 * bb + 1, r + 2, r + 3))
        a('v_permlane16_swap_b32 v%d, v%d' % (QP + 4 * h, QP + 4 * h + 2))
        a('v_permlane16_swap_b32 v%d, v%d' % (QP + 4 * h + 1, QP + 4 * h + 3))
    stamp('A_epiq')
    a('s_cmp_eq_u32 s29, 0')
    a('s_cbranch_scc0 L_A_nopoll')
    a('s_lshl_b32 s52, s28, 8')
    a('v_mov_b32 v16, s52')
    spin_wait('v16', S_WS, 16, 'cnt16')
    a.label('L_A_nopoll')
    a('s_barrier')
    stamp('A_sync16')
    a('v_and_b32 v16, 3, v1')
    a('v_bfe_u32 v17, v1, 3, 1')
    a('v_lshl_add_u32 v16, v17, 2, v16')
    a('v_bfe_u32 v17, v1, 2, 1')
    a('v_lshl_add_u32 v16, v17, 3, v16')
    a('v_bfe_u32 v17, v1, 4, 1')
    a('v_cmp_eq_u32 vcc, 1, v17')
    a('v_cndmask_b32_e64 v16, v16, 16, vcc')
    a('v_lshlrev_b32 v16, 6, v16')
    a('v_lshrrev_b32 v17, 5, v1')
    a('v_lshl_add_u32 v16, v17, 5, v16')
    a('s_lshl_b32 s52, s28, 2'); a('s_mul_i32 s52, s52, %d' % KVS); a('s_add_u32 s52, s52, 0x%x' % KV)
    for h in range(4):
        a('s_add_u32 s53, s52, %d' % (h * KVS))
        a('buffer_load_dwordx4 %s, v16, %s, s53 offen sc1' % (vr(KZ + 8 * h, 4), srd(SRD_WS)))
        a('buffer_load_dwordx4 %s, v16, %s, s53 offen offset:16 sc1' % (vr(KZ + 8 * h + 4, 4), srd(SRD_WS)))
    a('s_lshl_b32 s52, s28, 12')
    a('v_lshlrev_b32 v16, 4, v1'); a('v_add_u32 v16, s52, v16')
    a('s_lshl_b32 s53, s27, 17'); a('s_lshl_b32 s54, s29, 15'); a('s_add_u32 s53, s53, s54'); a('s_add_u32 s53, s53, 0x%x' % CH)
    for h in range(4):
        a('s_waitcnt vmcnt(%d)' % (6 - 2 * h))
        for q in range(4):
            a('v_cvt_pk_bf16_f32 v%d, v%d, v%d' % (AOP + 4 * h + q, KZ + 8 * h + 2 * q, KZ + 8 * h + 2 * q + 1))
        a('v_mfma_f32_32x32x16_bf16 %s, %s, %s, 0' % (vr(D1 + 16 * h, 16), vr(AOP + 4 * h, 4), vr(QP + 4 * h, 4)))
    a('s_mov_b32 s58, 0x%x' % fbits(1e-6))
    for h in range(4):
        d = D1 + 16 * h
        a('v_add_f32 v%d, s58, v%d' % (d + 8, d + 8))
        a('v_rcp_f32 v%d, v%d' % (d + 8, d + 8))
        for q in range(4):
            a('v_pk_mul_f32 %s, %s, %s op_sel_hi:[1,0]' % (vr(d + 2 * q, 2), vr(d + 2 * q, 2), vr(d + 8, 2)))
        for q in range(4):
            a('v_cvt_pk_bf16_f32 v%d, v%d, v%d' % (OP + 4 * h + q, d + 2 * q, d + 2 * q + 1))
        a('buffer_store_dwordx4 %s, v16, %s, s53 offen offset:%d sc1' % (vr(OP + 4 * h, 4), srd(SRD_WS), h * 1024))
    stamp('A_o')

def phase2():
    a.label('L_P2')
    a('s_barrier')
    stamp('P2_go')
    make_srd(SRD_OUT, S_OUT, 2048 * 2048)
    a('s_lshl_b32 s52, s26, 4'); a('s_add_u32 s52, s52, s27'); a('s_lshl_b32 s52, s52, 2'); a('s_add_u32 s52, s52, s29')
    a('s_lshl_b32 s52, s52, 15'); a('s_add_u32 s52, s52, 0x%x' % CH)
    a('v_lshlrev_b32 v2, 4, v1')
    for h in range(32):
        if h % 4 == 0 and h: a('s_add_u32 s52, s52, 4096')
        a('buffer_load_dwordx4 %s, v2, %s, s52 offen offset:%d sc1' % (ar(4 * h, 4), srd(SRD_WS), (h % 4) * 1024))
    a('v_lshrrev_b32 v3, 5, v1')
    a('v_lshlrev_b32 v3, 10, v3')
    a('v_bfe_u32 v4, v1, 2, 2')
    a('v_lshl_add_u32 v3, v4, 7, v3')
    a('v_bfe_u32 v4, v1, 4, 1')
    a('v_lshl_add_u32 v3, v4, 5, v3')
    a('v_and_b32 v4, 3, v1')
    a('v_lshl_add_u32 v3, v4, 3, v3')
    a('v_bfe_u32 v4, v1, 3, 1')
    a('v_lshlrev_b32 v4, 6, v4')
    a('v_xor_b32 v3, v3, v4')
    a('v_add_u32 v3, %d, v3' % WO_BASE)
    a('v_xor_b32 v4, 64, v3')
    WF = [20, 28, 36]; ACC = 48
    def reads(h, F):
        return ['ds_read_b64_tr_b16 %s, v%d offset:%d' % (vr(F + 4 * tl + 2 * jj, 2), 3 + tl, h * 2048 + jj * 512)
                for tl in range(2) for jj in range(2)]
    for it in reads(0, WF[0]) + reads(1, WF[1]): a(it)
    for h in range(32):
        F = WF[h % 3]
        nxt = reads(h + 2, WF[(h + 2) % 3]) if h + 2 < 32 else []
        for it in nxt: a(it)
        outstanding = (8 if h + 2 < 32 else (4 if h + 1 < 32 else 0))
        a('s_waitcnt vmcnt(%d) lgkmcnt(%d)' % (31 - h, outstanding))
        for tl in range(2):
            c = vr(ACC + 16 * tl, 16) if h else '0'
            a('v_mfma_f32_32x32x16_bf16 %s, %s, %s, %s' % (vr(ACC + 16 * tl, 16), vr(F + 4 * tl, 4), ar(4 * h, 4), c))
    stamp('P2_gemm')
    PK = 84
    a('v_and_b32 v5, 31, v1')
    a('v_and_b32 v6, 7, v5')
    a('v_lshlrev_b32 v7, 7, v5')
    a('s_lshl_b32 s52, s29, 12')
    a('v_add_u32 v7, s52, v7')
    a('v_lshrrev_b32 v8, 5, v1')
    a('v_lshl_add_u32 v7, v8, 3, v7')
    for tl in range(2):
        for q in range(4):
            d = ACC + 16 * tl + 4 * q; p = PK + 2 * (tl * 4 + q)
            a('v_cvt_pk_bf16_f32 v%d, v%d, v%d' % (p, d, d + 1))
            a('v_cvt_pk_bf16_f32 v%d, v%d, v%d' % (p + 1, d + 2, d + 3))
            a('v_xor_b32 v9, %d, v6' % (tl * 4 + q))
            a('v_lshl_add_u32 v%d, v9, 4, v7' % (10 + (tl * 4 + q) % 2))
            a('ds_write_b64 v%d, %s' % (10 + (tl * 4 + q) % 2, vr(p, 2)))
    a('v_lshrrev_b32 v5, 3, v1')
    a('v_and_b32 v6, 7, v1')
    a('v_xor_b32 v8, v5, v6')
    a('v_lshlrev_b32 v8, 4, v8')
    a('v_lshl_add_u32 v8, v5, 7, v8')
    a('v_add_u32 v8, s52, v8')
    a('v_lshlrev_b32 v9, s75, v5')
    a('v_lshl_add_u32 v9, v6, 4, v9')
    a('s_lshl_b32 s53, s28, 7'); a('s_add_u32 s74, s74, s53')
    a('s_lshl_b32 s54, 8, s75')
    a('s_waitcnt lgkmcnt(0)')
    for it in range(4):
        a('ds_read_b128 %s, v8 offset:%d' % (vr(100 + 4 * it, 4), it * 1024))
    for it in range(4):
        a('s_waitcnt lgkmcnt(%d)' % (3 - it))
        a('buffer_store_dwordx4 %s, v9, %s, s74 offen' % (vr(100 + 4 * it, 4), srd(SRD_OUT)))
        if it < 3: a('s_add_u32 s74, s74, s54')
    if OPT['stamps']:
        a('s_waitcnt vmcnt(0)')
        stamp('end')
        a('s_waitcnt lgkmcnt(0)')
        a('s_lshl_b32 s52, s2, 2'); a('s_add_u32 s52, s52, s29'); a('s_lshl_b32 s52, s52, 7'); a('s_add_u32 s52, s52, 0x%x' % STAMP)
        a('v_lshlrev_b32 v2, 2, v1')
        a('v_mov_b32 v3, 0')
        for i in range(13):
            a('v_cmp_eq_u32 vcc, %d, v1' % i)
            a('v_mov_b32 v4, s%d' % (76 + 2 * i))
            a('v_cndmask_b32 v3, v3, v4, vcc')
        a('s_mov_b64 exec, 0x1fff')
        a('buffer_store_dword v3, v2, %s, s52 offen' % srd(SRD_WS))
    if OPT['span']:
        a('s_waitcnt vmcnt(0)')
        a('s_memrealtime s[92:93]')
        a('s_memtime s[94:95]')
        a('s_waitcnt lgkmcnt(0)')
        a('s_not_b32 s96, s96')
        a('s_sub_u32 s94, s94, s98')
        a('v_mov_b32 v2, 16'); a('v_mov_b32 v3, s96')
        a('v_mov_b32 v4, 20'); a('v_mov_b32 v5, s92')
        a('v_mov_b32 v6, 24'); a('v_mov_b32 v7, s94')
        a('s_mov_b64 exec, 1')
        a('global_atomic_umax v2, v3, s[22:23] sc1')
        a('global_atomic_umax v4, v5, s[22:23] sc1')
        a('global_atomic_umax v6, v7, s[22:23] sc1')
    a('s_endpgm')

hdr = open('concat_heads__linear_attn_block__sliding_local_dilated__prompt.s.ref').read().split('\n')
for l in hdr:
    if l.startswith('; @launch'): break
    a(l)
if OPT['empty2']:
    a('; @launch kernel=%s grid=(256,1,1) block=(256,1,1) lds=%d' % (KNAME, LDS_BYTES))
    for i in range(OPT['empty2']):
        a('; @launch kernel=empty_kernel grid=(256,1,1) block=(256,1,1) lds=0')
else:
    a('; @launch grid=(256,1,1) block=(256,1,1) lds=%d' % LDS_BYTES)
a('.amdgcn_target "amdgcn-amd-amdhsa--gfx950"')
kernel_begin(a, KNAME)
body_start = len(a.lines)
prologue()
base = NSTAMP[0]
a_path()
NSTAMP[0] = base
b_path()
NSTAMP[0] = 10
phase2()
body = fix_hazards(a.lines[body_start:], verbose=True)
a.lines = a.lines[:body_start] + body
if OPT['empty2']:
    kernel_begin(a, 'empty_kernel')
    a('s_endpgm')
kernel_desc(a, KNAME, 384, 102, 256)
if OPT['empty2']:
    kernel_desc(a, 'empty_kernel', 64, 32)
open(OPT['out'], 'w').write(a.text())
print('lines', len(a.lines))
```

```python
import sys, struct
from asmlib import *

KNAME = 'concat_heads__linear_attn_block__sliding_local_dilated__prompt_kernel'
OPT = dict(stamps=0, out='k.s', spin=1 << 20, span=0, empty2=0, pf=1, p2pre=8,
           b_nodma=0, b_noread=0, b_nomfma=0)
for arg in sys.argv[1:]:
    k, v = arg.split('=')
    OPT[k] = int(v, 0) if k not in ('out',) else v

def fbits(x): return struct.unpack('<I', struct.pack('<f', x))[0]
LOG2E = 1.4426950408889634
NEG = -1.0e30

CNT16 = 0x0000; CNT8 = 0x1000; KV = 0x4000; KVS = 1280; CH = 0x100000; STAMP = 0x600000
WS_SIZE = 0x800000
NZERO_WG = 16
WO_BASE = 98304
B_SLOT = 43008
A_SLOT = 16384
A_SCR = 81920
A_ZSCR = 32768
LDS_BYTES = 163840

S_AX, S_AW, S_AO, S_BX, S_BW, S_BO, S_OUT, S_DBG, S_WS = 8, 10, 12, 14, 16, 18, 20, 22, 24
sBR, sRB, sHG, sWV = 26, 27, 28, 29
SRD_X, SRD_W, SRD_O, SRD_WS, SRD_OUT = 32, 36, 40, 44, 48
def srd(r): return 's[%d:%d]' % (r, r + 3)
def vr(r, n=1): return 'v%d' % r if n == 1 else 'v[%d:%d]' % (r, r + n - 1)
def ar(r, n=1): return 'a%d' % r if n == 1 else 'a[%d:%d]' % (r, r + n - 1)

a = Asm()
NSTAMP = [0]
def stamp(name):
    if not OPT['stamps']: return
    i = NSTAMP[0]; NSTAMP[0] += 1
    assert i < 13
    a('s_memtime s[%d:%d]   ; stamp %s' % (76 + 2 * i, 77 + 2 * i, name))

class VM:
    def __init__(self): self.q = []
    def issue(self, tag, n=1): self.q += [tag] * n
    def count_after(self, tag):
        if tag not in self.q: return None
        idx = max(i for i, t in enumerate(self.q) if t == tag)
        return len(self.q) - 1 - idx
    def wait(self, tag):
        n = self.count_after(tag)
        if n is None: return
        assert n <= 63
        a('s_waitcnt vmcnt(%d)   ; %s' % (n, tag))
        self.q = self.q[len(self.q) - n:] if n else []
    def wait_all_of(self, tags):
        ns = [(self.count_after(t), t) for t in tags if self.count_after(t) is not None]
        if ns: self.wait(min(ns)[1])
    def all(self):
        a('s_waitcnt vmcnt(0)'); self.q = []

def make_srd(r, sp, size):
    a('s_mov_b32 s%d, s%d' % (r, sp)); a('s_mov_b32 s%d, s%d' % (r + 1, sp + 1))
    a('s_mov_b32 s%d, 0x%x' % (r + 2, size)); a('s_mov_b32 s%d, 0x20000' % (r + 3))

def weave(main, streams):
    slots = [[] for _ in main]; tail = []
    for items, first, step in streams:
        for k, it in enumerate(items):
            pos = int(first + k * step)
            (slots[pos] if pos < len(main) else tail).append(it)
    def em(it):
        if isinstance(it, tuple):
            a(it[0]); it[1]()
        else: a(it)
    for m, sl in zip(main, slots):
        em(m)
        for it in sl: em(it)
    for it in tail: em(it)

def spin_wait(vaddr, base, cmp_lit, name, vd):
    L = 'L_spin_' + name; D = 'L_spun_' + name
    a('s_mov_b32 s56, 0')
    a.label(L)
    a('global_load_dword v%d, %s, s[%d:%d] sc1' % (vd, vaddr, base, base + 1))
    a('s_waitcnt vmcnt(0)')
    a('v_readfirstlane_b32 s57, v%d' % vd)
    a('s_add_u32 s56, s56, 1')
    a('s_cmp_ge_u32 s56, 0x%x' % OPT['spin'])
    a('s_cbranch_scc1 %s' % D)
    a('s_cmp_lt_u32 s57, %d' % cmp_lit)
    a('s_cbranch_scc1 %s' % L)
    a.label(D)

def init_load(vz, vd):
    return 'v_mov_b32 v%d, 0\nglobal_load_dword v%d, v%d, s[%d:%d] sc1' % (vz, vd, vz, S_DBG, S_DBG + 1)
def init_check(name, vz, vd):
    a('v_readfirstlane_b32 s57, v%d' % vd)
    a('s_cmp_ge_u32 s57, %d' % NZERO_WG)
    a('s_cbranch_scc1 L_initok_%s' % name)
    spin_wait('v%d' % vz, S_DBG, NZERO_WG, 'init_' + name, vd)
    a.label('L_initok_%s' % name)

def prologue():
    a('s_cmp_ge_u32 s2, 256')
    a('s_cbranch_scc0 L_go')
    a('s_endpgm')
    a.label('L_go')
    a('s_load_dwordx16 s[8:23], s[0:1], 0')
    a('s_load_dwordx2 s[24:25], s[0:1], 64')
    stamp('start')
    if OPT['span']:
        a('s_memrealtime s[96:97]')
        a('s_memtime s[98:99]')
    a('v_and_b32 v1, 63, v0')
    a('v_lshrrev_b32 v2, 6, v0')
    a('s_lshr_b32 s26, s2, 2')
    a('v_readfirstlane_b32 s29, v2')
    a('s_and_b32 s26, s26, 1')
    a('s_and_b32 s52, s2, 3')
    a('s_lshr_b32 s53, s2, 3')
    a('s_lshr_b32 s27, s53, 3')
    a('s_lshl_b32 s52, s52, 2')
    a('s_add_u32 s27, s27, s52')
    a('s_and_b32 s28, s53, 7')
    if OPT['pf']:
        a('s_lshl_b32 s56, s53, 2'); a('s_add_u32 s56, s56, s29')
        a('s_cmp_ge_u32 s56, (L_kend-L_pf_pc)>>10')
        a('s_cbranch_scc1 L_nopf')
        a('s_getpc_b64 s[54:55]')
        a.label('L_pf_pc')
        a('s_lshl_b32 s56, s56, 10')
        a('v_lshlrev_b32 v3, 4, v1')
        a('v_add_u32 v3, s56, v3')
        a('global_load_dwordx4 v[240:243], v3, s[54:55]')
        a.label('L_nopf')
    a('v_lshrrev_b32 v16, 3, v1')
    a('s_lshl_b32 s52, s29, 4')
    a('v_add_u32 v17, s52, v16')
    a('v_mul_u32_u24 v17, 3072, v17')
    a('v_lshrrev_b32 v18, 4, v1')
    a('v_and_b32 v19, 1, v18')
    a('v_lshlrev_b32 v19, 1, v19')
    a('v_and_b32 v20, 7, v1')
    a('v_xor_b32 v19, v19, v20')
    a('v_lshlrev_b32 v19, 4, v19')
    a('s_lshl_b32 s52, s28, 7')
    a('v_add3_u32 v7, v17, v19, s52')
    a('v_xor_b32 v8, 64, v7')
    a('v_add_u32 v8, %d, v8' % (8 * 3072))
    a('s_waitcnt lgkmcnt(0)')
    make_srd(SRD_WS, S_WS, WS_SIZE)
    a('s_cmp_ge_u32 s2, %d' % NZERO_WG)
    a('s_cbranch_scc1 L_nozero')
    a('v_mov_b32 v24, 0'); a('v_mov_b32 v25, 0'); a('v_mov_b32 v26, 0'); a('v_mov_b32 v27, 0')
    a('v_lshlrev_b32 v22, 4, v1')
    a('s_lshl_b32 s52, s2, 12')
    a('s_lshl_b32 s53, s29, 10')
    a('s_add_u32 s52, s52, s53')
    a('buffer_store_dwordx4 v[24:27], v22, %s, s52 offen sc1' % srd(SRD_WS))
    a.label('L_nozero')
    a('s_cmp_eq_u32 s26, 0')
    a('s_cbranch_scc0 L_B')

def wfrag_base_items():
    return ['v_lshlrev_b32 v9, 10, v18', 'v_bfe_u32 v21, v1, 2, 2', 'v_lshl_add_u32 v9, v21, 7, v9',
            'v_and_b32 v21, 3, v1', 'v_lshl_add_u32 v9, v21, 3, v9', 'v_bfe_u32 v21, v1, 3, 2', 'v_lshl_add_u32 v9, v21, 5, v9']

def zero_signal(vm_after):
    L = a.newlabel('L_nosig')
    a('s_cmp_ge_u32 s2, %d' % NZERO_WG)
    a('s_cbranch_scc1 %s' % L)
    a('s_waitcnt vmcnt(%d)' % vm_after)
    a('s_barrier')
    a('s_cmp_eq_u32 s29, 0')
    a('s_cbranch_scc0 %s' % L)
    a('v_mov_b32 v244, 0'); a('v_mov_b32 v245, 1')
    a('s_mov_b64 exec, 1')
    a('global_atomic_add v244, v245, s[%d:%d] sc1' % (S_DBG, S_DBG + 1))
    a('s_mov_b64 exec, -1')
    a.label(L)

def wo_dma_list(lo, hi, voff, stmp):
    L = []
    for ii in range(lo, hi):
        L.append('s_add_u32 m0, s70, 0x%x\ns_mov_b32 s%d, 0x%x\nbuffer_load_dwordx4 v%d, %s, s%d offen lds' %
                 (ii * 1024, stmp, ii * 8192, voff, srd(SRD_O), stmp))
    return L

def wo_voff_items(vdst, vt, st=52):
    return ['v_lshrrev_b32 v%d, 3, v1' % vt,
            's_lshl_b32 s%d, s29, 7' % st,
            'v_add_u32 v%d, s%d, v%d' % (vt, st, vt),
            'v_lshlrev_b32 v%d, 10, v%d' % (vt, vt),
            'v_bfe_u32 v%d, v1, 4, 1' % (vt + 1),
            'v_lshlrev_b32 v%d, 2, v%d' % (vt + 1, vt + 1),
            'v_and_b32 v%d, 7, v1' % (vt + 2),
            'v_xor_b32 v%d, v%d, v%d' % (vt + 1, vt + 1, vt + 2),
            'v_lshlrev_b32 v%d, 4, v%d' % (vt + 1, vt + 1),
            's_lshl_b32 s%d, s28, 7' % st,
            'v_add3_u32 v%d, v%d, v%d, s%d' % (vdst, vt, vt + 1, st),
            's_lshl_b32 s70, s29, 14',
            's_add_u32 s70, s70, 0x%x' % WO_BASE]

def publish_signal(br):
    a('s_waitcnt vmcnt(0)')
    a('s_barrier')
    stamp('published')
    a('s_lshl_b32 s59, s27, 8')
    a('s_add_u32 s59, s59, 0x%x' % (CNT8 + br * 16 * 256))
    a('s_cmp_eq_u32 s29, 0')
    a('s_cbranch_scc0 L_pub_%d' % br)
    a('v_mov_b32 v16, s59'); a('v_mov_b32 v18, 1')
    a('s_mov_b64 exec, 1')
    a('global_atomic_add v16, v18, s[%d:%d] sc1' % (S_WS, S_WS + 1))
    a('s_mov_b64 exec, -1')
    spin_wait('v16', S_WS, 8, 'cnt8_%d' % br, 17)
    a.label('L_pub_%d' % br)

B_F = [dict(x=20, w=56), dict(x=68, w=104)]
B_Q, B_K, B_V = 116, 148, 184
B_CPREV, B_CCUR, B_CH0, B_CH1, B_ONES = 220, 224, 228, 232, 236

def b_dma_w(base, lit=0):
    L = []
    for seg in (1, 2, 0):
        for ii in range(2):
            L.append('s_add_u32 m0, %s, 0x%x\nbuffer_load_dwordx4 v%d, %s, s%d offen lds' %
                     (base, lit + seg * 8192 + ii * 1024, 7 + ii, srd(SRD_W), 61 + seg))
    L[-1] += '\ns_add_u32 s61, s61, 0x30000\ns_add_u32 s62, s62, 0x30000\ns_add_u32 s63, s63, 0x30000'
    return L
def b_dma_x(bx, bh, lit=0):
    L = []
    for ii in range(4):
        L.append('s_add_u32 m0, %s, 0x%x\nbuffer_load_dwordx4 v%d, %s, s60 offen lds' % (bx, lit + ii * 1024, 2 + ii, srd(SRD_X)))
    L.append('s_add_u32 m0, %s, 0x%x\ns_mov_b64 exec, 0xffffffff\nbuffer_load_dwordx4 v6, %s, s60 offen lds\ns_mov_b64 exec, -1\ns_add_u32 s60, s60, 128' %
             (bh, lit, srd(SRD_X)))
    return L

def b_reads(F, vx, vw, kk):
    L = []
    if OPT['b_noread']: return L
    for seg in range(3):
        for jj in range(2):
            L.append('ds_read_b64_tr_b16 %s, v%d offset:%d' % (vr(F['w'] + seg * 4 + jj * 2, 2), vw, seg * 8192 + kk * 4096 + jj * 512))
    for t in range(9):
        L.append('ds_read_b128 %s, v%d offset:%d' % (vr(F['x'] + 4 * t, 4), vx, t * 2048))
    return L

def b_mfmas(F):
    L = []
    if OPT['b_nomfma']: return ['s_nop 0'] * 26
    for t in range(9):
        x = vr(F['x'] + 4 * t, 4)
        if t < 8:
            L.append('v_mfma_f32_16x16x32_bf16 %s, %s, %s, %s' % (vr(B_Q + 4 * t, 4), vr(F['w'], 4), x, vr(B_Q + 4 * t, 4)))
        L.append('v_mfma_f32_16x16x32_bf16 %s, %s, %s, %s' % (vr(B_K + 4 * t, 4), vr(F['w'] + 4, 4), x, vr(B_K + 4 * t, 4)))
        L.append('v_mfma_f32_16x16x32_bf16 %s, %s, %s, %s' % (vr(B_V + 4 * t, 4), x, vr(F['w'] + 8, 4), vr(B_V + 4 * t, 4)))
    return L

def b_stage(dma_x, dma_w, vmn, last=False, loop=None):
    nd = OPT['b_nodma']
    misc0 = []
    if not last:
        misc0 += ['v_add_u32 v15, s65, v10', 'v_add_u32 v16, s65, v12']
    if dma_w: misc0 += ['s_add_u32 s69, s64, s73']
    dx = b_dma_x('s67', 's68') if (dma_x and not nd) else []
    pre = ['s_add_u32 s67, s66, s71\ns_add_u32 s68, s66, s72'] if dma_x else []
    weave(b_mfmas(B_F[0]), [(pre, 0, 1), (b_reads(B_F[1], 13, 14, 1), 0, 1), (dx, 3, 5), (misc0, 16, 2)])
    a('s_waitcnt lgkmcnt(0)')
    if vmn is not None: a('s_waitcnt vmcnt(%d)' % vmn)
    a('s_barrier')
    rd = b_reads(B_F[0], 15, 16, 0) if not last else []
    dw = b_dma_w('s69') if (dma_w and not nd) else []
    misc1 = []
    if not last:
        misc1 = ['v_add_u32 v13, s65, v11', 'v_mov_b32 v14, v16',
                 's_mov_b32 s53, s64\ns_mov_b32 s64, s65', 's_mov_b32 s65, s66\ns_mov_b32 s66, s53']
    if loop: misc1 += ['s_add_u32 s74, s74, 1\ns_cmp_lt_u32 s74, %d' % loop]
    weave(b_mfmas(B_F[1]), [(rd, 0, 1), (dw, 2, 4), (misc1, 15 if not dw else 23, 2 if not dw else 0)])
    if not last: a('s_waitcnt lgkmcnt(0)')

def b_path():
    a.label('L_B')
    make_srd(SRD_X, S_BX, 2048 * 1024)
    make_srd(SRD_W, S_BW, 512 * 3072)
    a('s_lshl_b32 s71, s29, 12')
    a('s_lshl_b32 s72, s29, 9'); a('s_add_u32 s72, s72, 16384')
    a('s_lshl_b32 s73, s29, 11'); a('s_add_u32 s73, s73, 18432')
    a('s_mov_b32 s60, 0'); a('s_mov_b32 s61, 0'); a('s_mov_b32 s62, 1024'); a('s_mov_b32 s63, 2048')
    for it in b_dma_w('s73', 0): a(it)
    a('s_lshl_b32 s52, s27, 7')
    a('s_and_b32 s53, s29, 1')
    a('s_lshr_b32 s54, s29, 1')
    a('s_lshl_b32 s55, s53, 6')
    a('s_add_u32 s55, s55, s54')
    a('s_add_u32 s55, s55, s52')
    a('s_lshl_b32 s55, s55, 10')
    a('v_lshlrev_b32 v17, 11, v16')
    a('v_xor_b32 v19, v20, v18')
    a('v_lshlrev_b32 v19, 4, v19')
    a('v_add3_u32 v2, v17, v19, s55')
    a('v_xor_b32 v3, 64, v2')
    a('v_add_u32 v4, 32768, v2')
    a('v_add_u32 v5, 49152, v3')
    a('v_add_u32 v3, 16384, v3')
    a('s_lshl_b32 s55, s53, 3')
    a('s_add_u32 s55, s55, s54')
    a('s_add_u32 s55, s55, s52')
    a('s_sub_u32 s55, s55, 16')
    a('s_lshl_b32 s55, s55, 10')
    a('s_lshl_b32 s56, s29, 1')
    a('v_add_u32 v19, s56, v18')
    a('v_and_b32 v19, 7, v19')
    a('v_xor_b32 v19, v19, v20')
    a('v_lshlrev_b32 v19, 4, v19')
    a('v_add3_u32 v6, v17, v19, s55')
    for it in b_dma_x('s71', 's72', 0): a(it)
    dm = b_dma_w('s73', B_SLOT) + b_dma_x('s71', 's72', B_SLOT) + b_dma_w('s73', 2 * B_SLOT)
    setup = []
    setup += wfrag_base_items()
    setup += ['v_and_b32 v21, 15, v1', 'v_lshlrev_b32 v10, 7, v21', 'v_bfe_u32 v22, v1, 1, 3', 'v_xor_b32 v22, v22, v18',
              'v_lshl_add_u32 v10, v22, 4, v10', 'v_xor_b32 v11, 64, v10',
              's_lshl_b32 s57, s29, 5', 'v_xor_b32 v12, s57, v9', 'v_add_u32 v12, 18432, v12']
    setup += ['v_mov_b32 v%d, 0' % r for r in range(B_Q, B_V + 36)]
    setup += ['s_mov_b32 s58, 0x%x' % fbits(NEG), 's_cmp_eq_u32 s27, 0\ns_cselect_b32 s57, s58, 0', 'v_mov_b32 v22, s58', 'v_lshlrev_b32 v23, 2, v18']
    for r in range(4):
        setup += ['v_add_u32 v24, %d, v23' % r, 'v_sub_u32 v25, v24, v21', 'v_sub_u32 v26, v21, v24',
                  'v_cmp_le_i32 vcc, 9, v25\nv_cndmask_b32_e64 v%d, v22, 0, vcc' % (B_CPREV + r),
                  'v_cmp_ge_u32 vcc, 7, v26\nv_cndmask_b32_e64 v%d, v22, 0, vcc' % (B_CCUR + r),
                  'v_cmp_le_i32 vcc, 1, v25\nv_cmp_ge_u32 s[54:55], 7, v24\ns_and_b64 vcc, vcc, s[54:55]\nv_cndmask_b32_e64 v%d, v22, 0, vcc' % (B_CH0 + r),
                  'v_min_f32 v%d, s57, v%d' % (B_CH0 + r, B_CH0 + r),
                  'v_min_f32 v%d, s57, v%d' % (B_CH1 + r, B_CPREV + r),
                  'v_mov_b32 v%d, 0x3f803f80' % (B_ONES + r)]
    setup += wo_voff_items(17, 24)
    step = len(setup) / float(len(dm) + 1)
    weave(setup, [(dm, 2, step)])
    make_srd(SRD_O, S_BO, 512 * 1024)
    stamp('B_issued')
    zero_signal(28)
    a('s_mov_b32 s64, 0'); a('s_mov_b32 s65, %d' % B_SLOT); a('s_mov_b32 s66, %d' % (2 * B_SLOT))
    a('v_mov_b32 v13, v11'); a('v_mov_b32 v14, v12')
    a('s_mov_b32 s74, 0')
    a('s_waitcnt vmcnt(17)')
    a('s_barrier')
    stamp('B_first')
    for it in b_reads(B_F[0], 10, 12, 0): a(it)
    a('s_waitcnt lgkmcnt(0)')
    a.label('L_Bloop')
    b_stage(True, True, 11, loop=5)
    a('s_cbranch_scc1 L_Bloop')
    b_stage(True, False, 11)
    b_stage(False, False, 0)
    b_stage(False, False, None, last=True)
    stamp('B_gemm')
    b_attention()
    a('s_lshl_b32 s52, s27, 7')
    a('s_and_b32 s53, s29, 1'); a('s_lshl_b32 s53, s53, 6')
    a('s_lshr_b32 s54, s29, 1')
    a('s_add_u32 s52, s52, s53'); a('s_add_u32 s52, s52, s54')
    a('s_lshl_b32 s74, s52, 11'); a('s_add_u32 s74, s74, 1024')
    a('s_mov_b32 s75, 12')
    publish_signal(1)

def b_attention():
    QP, KP, LV = 20, 36, (54, 64)
    S = 116; MX = 180; T = 188; P = 74; OP = 20
    wo = wo_dma_list(0, 16, 17, 59)
    L = []
    for t in range(8):
        L.append('v_cvt_pk_bf16_f32 v%d, v%d, v%d' % (QP + 2 * t, B_Q + 4 * t, B_Q + 4 * t + 1))
        L.append('v_cvt_pk_bf16_f32 v%d, v%d, v%d' % (QP + 2 * t + 1, B_Q + 4 * t + 2, B_Q + 4 * t + 3))
    for t in range(9):
        L.append('v_cvt_pk_bf16_f32 v%d, v%d, v%d' % (KP + 2 * t, B_K + 4 * t, B_K + 4 * t + 1))
        L.append('v_cvt_pk_bf16_f32 v%d, v%d, v%d' % (KP + 2 * t + 1, B_K + 4 * t + 2, B_K + 4 * t + 3))
    for p in range(2):
        for k, t in enumerate([8] + [4 * p + b for b in range(4)]):
            L.append('v_cvt_pk_bf16_f32 v%d, v%d, v%d' % (LV[p] + 2 * k, B_V + 4 * t, B_V + 4 * t + 1))
            L.append('v_cvt_pk_bf16_f32 v%d, v%d, v%d' % (LV[p] + 2 * k + 1, B_V + 4 * t + 2, B_V + 4 * t + 3))
    weave(L, [([init_load(244, 245)], 0, 1), (wo[:6], 4, 8)])
    for t in range(8):
        b = t & 3; p = t >> 2
        prev = t - 1 if b > 0 else 8
        cm = B_CPREV if b > 0 else (B_CH0 if p == 0 else B_CH1)
        a('v_mfma_f32_16x16x16_bf16 %s, %s, %s, %s' % (vr(S + 8 * t, 4), vr(KP + 2 * prev, 2), vr(QP + 2 * t, 2), vr(cm, 4)))
        a('v_mfma_f32_16x16x16_bf16 %s, %s, %s, %s' % (vr(S + 8 * t + 4, 4), vr(KP + 2 * t, 2), vr(QP + 2 * t, 2), vr(B_CCUR, 4)))
    L = []
    for t in range(8):
        s = S + 8 * t
        L.append('v_max3_f32 v%d, v%d, v%d, v%d' % (MX + t, s, s + 1, s + 2))
        L.append('v_max3_f32 v%d, v%d, v%d, v%d' % (T + t, s + 3, s + 4, s + 5))
    for t in range(8):
        s = S + 8 * t
        L.append('v_max3_f32 v%d, v%d, v%d, v%d' % (MX + t, MX + t, s + 6, s + 7))
    for t in range(8):
        L.append('v_max_f32 v%d, v%d, v%d' % (MX + t, MX + t, T + t))
    weave(L, [(wo[6:9], 4, 8)])
    a('s_mov_b32 s52, 0x%x' % fbits(0.25 * LOG2E))
    a('s_mov_b32 s53, s52')
    def batch(m):
        A_, B_, C_, D_ = m, m + 1, m + 2, m + 3
        return ['v_permlane16_swap_b32 v%d, v%d' % (A_, B_),
                'v_permlane16_swap_b32 v%d, v%d' % (C_, D_),
                'v_max_f32 v%d, v%d, v%d' % (A_, A_, B_),
                'v_max_f32 v%d, v%d, v%d' % (C_, C_, D_),
                'v_permlane32_swap_b32 v%d, v%d' % (A_, C_),
                'v_max_f32 v%d, v%d, v%d' % (A_, A_, C_),
                'v_mul_f32 v%d, s52, v%d' % (A_, A_),
                'v_mov_b32 v%d, v%d' % (C_, A_),
                'v_permlane32_swap_b32 v%d, v%d' % (A_, C_),
                'v_mov_b32 v%d, v%d' % (B_, A_),
                'v_mov_b32 v%d, v%d' % (D_, C_),
                'v_permlane16_swap_b32 v%d, v%d' % (A_, B_),
                'v_permlane16_swap_b32 v%d, v%d' % (C_, D_)]
    b0 = batch(MX); b1 = batch(MX + 4)
    for x, y in zip(b0, b1):
        a(x); a(y)
    L = []
    for t in range(8):
        s = S + 8 * t
        mreg = MX + (t & ~1); sel = t & 1
        for q in range(4):
            L.append('v_pk_fma_f32 %s, %s, s[52:53], %s op_sel:[0,0,%d] op_sel_hi:[1,1,%d] neg_lo:[0,0,1] neg_hi:[0,0,1]' %
                     (vr(s + 2 * q, 2), vr(s + 2 * q, 2), vr(mreg, 2), sel, sel))
        for q in range(8):
            L.append('v_exp_f32 v%d, v%d' % (s + q, s + q))
        for q in range(4):
            L.append('v_cvt_pk_bf16_f32 v%d, v%d, v%d' % (P + 4 * t + q, s + 2 * q, s + 2 * q + 1))
    weave(L, [(wo[9:16], 4, 16)])
    for t in range(8):
        b = t & 3; p = t >> 2
        a('v_mfma_f32_16x16x32_bf16 %s, %s, %s, 0' % (vr(S + 8 * t, 4), vr(LV[p] + 2 * b, 4), vr(P + 4 * t, 4)))
        a('v_mfma_f32_16x16x32_bf16 %s, %s, %s, 0' % (vr(S + 8 * t + 4, 4), vr(B_ONES, 4), vr(P + 4 * t, 4)))
    a('s_lshl_b32 s52, s28, 2'); a('s_add_u32 s52, s52, s29'); a('s_lshl_b32 s52, s52, 10')
    a('v_lshlrev_b32 v16, 4, v1'); a('v_add_u32 v16, s52, v16')
    a('s_add_u32 s53, s27, 16'); a('s_lshl_b32 s53, s53, 17'); a('s_add_u32 s53, s53, 0x%x' % CH)
    for pr in range(4):
        for u in range(2):
            t = 2 * pr + u; s = S + 8 * t
            a('v_rcp_f32 v%d, v%d' % (s + 4, s + 4))
        for u in range(2):
            t = 2 * pr + u; s = S + 8 * t
            a('v_pk_mul_f32 %s, %s, %s op_sel_hi:[1,0]' % (vr(s, 2), vr(s, 2), vr(s + 4, 2)))
            a('v_pk_mul_f32 %s, %s, %s op_sel_hi:[1,0]' % (vr(s + 2, 2), vr(s + 2, 2), vr(s + 4, 2)))
            a('v_cvt_pk_bf16_f32 v%d, v%d, v%d' % (OP + 4 * pr + 2 * u, s, s + 1))
            a('v_cvt_pk_bf16_f32 v%d, v%d, v%d' % (OP + 4 * pr + 2 * u + 1, s + 2, s + 3))
        a('v_permlane16_swap_b32 v%d, v%d' % (OP + 4 * pr, OP + 4 * pr + 2))
        a('v_permlane16_swap_b32 v%d, v%d' % (OP + 4 * pr + 1, OP + 4 * pr + 3))
        a('s_add_u32 s54, s53, 0x%x' % (pr * 32768))
        a('buffer_store_dwordx4 %s, v16, %s, s54 offen sc1' % (vr(OP + 4 * pr, 4), srd(SRD_WS)))
    stamp('B_att')
    a('s_waitcnt vmcnt(20)')
    init_check('B', 244, 245)

A_F = [20, 52]
A_K, A_V, A_Q = 84, 116, 148
def a_xreg(ks, bb): return (ks * 2 + bb) * 4

def a_units(st):
    if st < 8: return [(1, st), (2, st)]
    q = st - 8
    return [(0, 2 * q), (0, 2 * q + 1)]

def a_dma_w(st, vm):
    L = []
    slot = (st % 5) * A_SLOT
    for u, (seg, c) in enumerate(a_units(st)):
        for ii in range(2):
            L.append(('s_add_u32 m0, s71, 0x%x\ns_mov_b32 s%d, 0x%x\nbuffer_load_dwordx4 v%d, %s, s%d offen lds' %
                      (slot + u * 8192 + ii * 1024, 52 + ii, c * 196608 + seg * 1024, 7 + ii, srd(SRD_W), 52 + ii),
                      lambda t='W%d' % st: vm.issue(t)))
    return L

def a_dma_x(c, vm):
    L = []
    for i in range(4):
        L.append(('s_add_u32 m0, s70, 0x%x\ns_mov_b32 s%d, 0x%x\nbuffer_load_dwordx4 v%d, %s, s%d offen lds' %
                  ((c % 4) * 4096 + i * 1024, 60 + (i & 1), (i >> 1) * 16384 + c * 128, 2 + (i & 1), srd(SRD_X), 60 + (i & 1)),
                  lambda t='x%d' % c: vm.issue(t)))
    return L

def a_xreads(c):
    L = []
    for kk in range(2):
        for bb in range(2):
            L.append('ds_read_b128 %s, v%d offset:%d' % (ar(a_xreg(2 * c + kk, bb), 4), 4 + kk, (c % 4) * 4096 + bb * 2048))
    return L

def a_reads(F, st, step):
    L = []
    slot = (st % 5) * A_SLOT
    for f in range(8):
        hh = f & 3; hi = f >> 2
        if st < 8: u, kk = hi, step
        else: u, kk = step, hi
        for jj in range(2):
            off = slot + u * 8192 + kk * 4096 + jj * 512
            if slot >= 4 * A_SLOT: v = 14 + hh; imm = off - 65536
            else: v = 10 + hh; imm = off
            assert 0 <= imm < 65536
            L.append('ds_read_b64_tr_b16 %s, v%d offset:%d' % (vr(F + 4 * f + 2 * jj, 2), v, imm))
    return L

def a_mfmas(F, st, step):
    L = []
    for f in range(8):
        hh = f & 3; hi = f >> 2
        for bb in range(2):
            w = vr(F + 4 * f, 4)
            if st < 8:
                ks = 2 * st + step
                x = ar(a_xreg(ks, bb), 4)
                acc = (A_K if hi == 0 else A_V) + (bb * 4 + hh) * 4
                L.append('v_mfma_f32_16x16x32_bf16 %s, %s, %s, %s' % (vr(acc, 4), x, w, vr(acc, 4)))
            else:
                c = 2 * (st - 8) + step
                ks = 2 * c + hi
                x = ar(a_xreg(ks, bb), 4)
                acc = A_Q + (bb * 4 + hh) * 4
                L.append('v_mfma_f32_16x16x32_bf16 %s, %s, %s, %s' % (vr(acc, 4), w, x, vr(acc, 4)))
    return L

def phi4(r, cm, tmp):
    L = []
    for q in range(2):
        L.append('v_pk_fma_f32 %s, %s, s[54:55], %s' % (vr(tmp + 2 * q, 2), vr(r + 2 * q, 2), vr(cm, 2)))
    for q in range(4):
        L.append('v_exp_f32_e64 v%d, v%d clamp' % (tmp + q, tmp + q))
    for q in range(4):
        L.append('v_max_f32 v%d, s58, v%d' % (r + q, r + q))
    for q in range(2):
        L.append('v_pk_add_f32 %s, %s, %s' % (vr(r + 2 * q, 2), vr(r + 2 * q, 2), vr(tmp + 2 * q, 2)))
    return L

def phi_consts(cm):
    a('s_mov_b32 s54, 0x%x' % fbits(LOG2E)); a('s_mov_b32 s55, s54')
    a('s_mov_b32 s58, 0x%x' % fbits(1e-6))
    a('v_mov_b32 v%d, 0x%x' % (cm, fbits(-1e-6 * LOG2E))); a('v_mov_b32 v%d, 0x%x' % (cm + 1, fbits(-1e-6 * LOG2E)))

def a_path():
    vm = VM()
    make_srd(SRD_X, S_AX, 2048 * 1024)
    make_srd(SRD_W, S_AW, 512 * 3072)
    a('s_lshl_b32 s71, s29, 11')
    a('s_lshl_b32 s70, s29, 14'); a('s_add_u32 s70, s70, 0x%x' % WO_BASE)
    a('s_lshl_b32 s52, s27, 7'); a('s_lshl_b32 s53, s29, 5'); a('s_add_u32 s52, s52, s53')
    a('v_add_u32 v2, s52, v16')
    a('v_lshlrev_b32 v2, 10, v2')
    a('v_xor_b32 v19, v20, v18')
    a('v_lshl_add_u32 v2, v19, 4, v2')
    a('v_xor_b32 v3, 64, v2')
    a('v_add_u32 v3, 8192, v3')
    def em(L):
        for it in L: a(it[0]); it[1]()
    em(a_dma_x(0, vm)); em(a_dma_w(0, vm))
    dm = []
    for st in range(1, 4): dm += a_dma_x(st, vm) + a_dma_w(st, vm)
    dm += a_dma_w(4, vm)
    setup = wfrag_base_items()
    for hh in range(4):
        setup += ['v_xor_b32 v%d, %d, v9' % (10 + hh, hh << 5), 'v_add_u32 v%d, 0x10000, v%d' % (14 + hh, 10 + hh)]
    setup += ['v_and_b32 v21, 15, v1', 'v_lshlrev_b32 v4, 7, v21', 'v_bfe_u32 v22, v1, 1, 3', 'v_xor_b32 v22, v22, v18',
              'v_lshl_add_u32 v4, v22, 4, v4', 'v_add_u32 v4, s70, v4', 'v_xor_b32 v5, 64, v4']
    setup += ['v_mov_b32 v%d, 0x%x' % (r, fbits(1e-6)) for r in range(A_K, A_K + 32)]
    setup += ['v_mov_b32 v%d, 0' % r for r in range(A_V, A_V + 32)]
    setup += ['v_mov_b32 v%d, 0x%x' % (r, fbits(1e-6)) for r in range(A_Q, A_Q + 32)]
    setup += wo_voff_items(6, 180, 62)
    step = len(setup) / float(len(dm) + 1)
    weave(setup, [(dm, 2, step)])
    make_srd(SRD_O, S_AO, 512 * 1024)
    stamp('A_issued')
    zero_signal(len(vm.q))
    vm.wait('W0')
    a('s_barrier')
    stamp('A_first')
    for it in a_xreads(0) + a_reads(A_F[0], 0, 0): a(it)
    a('s_waitcnt lgkmcnt(0)')
    for st in range(12):
        d0 = []; d1 = []
        if st + 4 <= 7: d0 = a_dma_x(st + 4, vm)
        if st == 5: d0 = [(init_load(244, 245), lambda: vm.issue('init'))]
        if st >= 8:
            k = st - 8
            wl = wo_dma_list(4 * k, 4 * k + 4, 6, 59)
            d0 = [(x, lambda: vm.issue('wo')) for x in wl[:2]]; d1 = [(x, lambda: vm.issue('wo')) for x in wl[2:]]
        if st + 5 <= 11: d1 = a_dma_w(st + 5, vm)
        weave(a_mfmas(A_F[0], st, 0), [(a_reads(A_F[1], st, 1), 0, 1), (d0, 1, 4)])
        a('s_waitcnt lgkmcnt(0)')
        if st + 1 <= 11: vm.wait_all_of(['W%d' % (st + 1), 'x%d' % (st + 1)])
        if st == 10: vm.wait('atom')
        a('s_barrier')
        if st == 10:
            a('s_cmp_eq_u32 s29, 0')
            a('s_cbranch_scc0 L_A_nosig16')
            a('s_lshl_b32 s52, s28, 8')
            a('v_mov_b32 v180, s52'); a('v_mov_b32 v181, 1')
            a('s_mov_b64 exec, 1')
            a('global_atomic_add v180, v181, s[%d:%d] sc1' % (S_WS, S_WS + 1))
            a('s_mov_b64 exec, -1')
            a.label('L_A_nosig16')
        rd = []
        if st + 1 <= 7: rd += a_xreads(st + 1)
        if st + 1 <= 11: rd += a_reads(A_F[0], st + 1, 0)
        weave(a_mfmas(A_F[1], st, 1), [(rd, 0, 0.8), (d1, 1, 4)])
        a('s_waitcnt lgkmcnt(0)')
        if st == 7:
            stamp('A_pass1')
            a_epi_k(vm)
            stamp('A_epik')
    stamp('A_pass2')
    a_epi_q(vm)
    a('s_lshl_b32 s52, s27, 7'); a('s_lshl_b32 s53, s29, 5'); a('s_add_u32 s52, s52, s53')
    a('s_lshl_b32 s74, s52, 11')
    a('s_mov_b32 s75, 11')
    publish_signal(0)
    a('s_branch L_P2')

def a_epi_k(vm):
    KP, VP = 184, 200
    TMP = 216; CM = 220; ONES = 224; KVR = 228; ZR = 246
    phi_consts(CM)
    for q in range(4): a('v_mov_b32 v%d, 0x3f803f80' % (ONES + q))
    for h in range(4):
        for bb in range(2):
            r = A_K + (bb * 4 + h) * 4
            t = TMP if bb == 0 else 228
            for it in phi4(r, CM, t): a(it)
            a('v_cvt_pk_bf16_f32 v%d, v%d, v%d' % (KP + 4 * h + 2 * bb, r, r + 1))
            a('v_cvt_pk_bf16_f32 v%d, v%d, v%d' % (KP + 4 * h + 2 * bb + 1, r + 2, r + 3))
            r = A_V + (bb * 4 + h) * 4
            a('v_cvt_pk_bf16_f32 v%d, v%d, v%d' % (VP + 4 * h + 2 * bb, r, r + 1))
            a('v_cvt_pk_bf16_f32 v%d, v%d, v%d' % (VP + 4 * h + 2 * bb + 1, r + 2, r + 3))
        a('v_mfma_f32_16x16x32_bf16 %s, %s, %s, 0' % (vr(A_V + 4 * h, 4), vr(VP + 4 * h, 4), vr(KP + 4 * h, 4)))
        a('v_mfma_f32_16x16x32_bf16 %s, %s, %s, 0' % (vr(A_K + 4 * h, 4), vr(ONES, 4), vr(KP + 4 * h, 4)))
    a('v_lshlrev_b32 v%d, 4, v1' % TMP)
    a('s_lshl_b32 s52, s29, 12')
    a('v_add_u32 v%d, s52, v%d' % (TMP + 1, TMP))
    a('v_lshlrev_b32 v%d, 2, v1' % (TMP + 2))
    a('s_lshl_b32 s52, s29, 10')
    a('v_add_u32 v%d, s52, v%d' % (TMP + 3, TMP + 2))
    a('v_add_u32 v%d, %d, v%d' % (TMP + 1, A_SCR, TMP + 1))
    for h in range(4):
        a('ds_write_b128 v%d, %s offset:%d' % (TMP + 1, vr(A_V + 4 * h, 4), h * 1024))
        a('ds_write_b32 v%d, v%d offset:%d' % (TMP + 3, A_K + 4 * h, A_ZSCR + h * 256))
    a('s_lshl_b32 s52, s29, 10'); a('s_add_u32 s52, s52, %d' % A_SCR)
    a('v_add_u32 v%d, s52, v%d' % (TMP, TMP))
    a('s_lshl_b32 s52, s29, 8')
    a('v_add_u32 v%d, s52, v%d' % (TMP + 2, TMP + 2))
    a('s_waitcnt lgkmcnt(0)')
    a('s_barrier')
    for w in range(4):
        a('ds_read_b128 %s, v%d offset:%d' % (vr(KVR + 4 * w, 4), TMP, w * 4096))
        a('ds_read_b32 v%d, v%d offset:%d' % (ZR + w, TMP + 2, A_ZSCR + w * 1024))
    vm.wait('init')
    init_check('A', 244, 245)
    a('v_and_b32 v%d, 15, v1' % TMP); a('v_lshlrev_b32 v%d, 2, v%d' % (TMP, TMP))
    a('v_lshrrev_b32 v%d, 4, v1' % (TMP + 1))
    a('v_lshl_add_u32 v%d, v%d, 8, v%d' % (TMP + 1, TMP + 1, TMP))
    a('s_lshl_b32 s52, s28, 2'); a('s_add_u32 s52, s52, s29'); a('s_mul_i32 s52, s52, %d' % KVS); a('s_add_u32 s52, s52, 0x%x' % KV)
    a('s_waitcnt lgkmcnt(0)')
    for q in range(4):
        a('v_add_f32 v%d, v%d, v%d' % (KVR + q, KVR + q, KVR + 4 + q))
        a('v_add_f32 v%d, v%d, v%d' % (KVR + 8 + q, KVR + 8 + q, KVR + 12 + q))
    a('v_add_f32 v%d, v%d, v%d' % (ZR, ZR, ZR + 1)); a('v_add_f32 v%d, v%d, v%d' % (ZR + 2, ZR + 2, ZR + 3))
    for q in range(4):
        a('v_add_f32 v%d, v%d, v%d' % (KVR + q, KVR + q, KVR + 8 + q))
    a('v_add_f32 v%d, v%d, v%d' % (ZR, ZR, ZR + 2))
    for q in range(4):
        a('buffer_atomic_add_f32 v%d, v%d, %s, s52 offen offset:%d' % (KVR + q, TMP + 1, srd(SRD_WS), q * 64)); vm.issue('atom')
    a('s_mov_b64 exec, 0xffff')
    a('buffer_atomic_add_f32 v%d, v%d, %s, s52 offen offset:1024' % (ZR, TMP, srd(SRD_WS))); vm.issue('atom')
    a('s_mov_b64 exec, -1')

def a_epi_q(vm):
    QP = 20; TMP = 216; CM = 220; KZ = 36; AOP = 68; D1 = 84; OP = 184
    KVL = 0
    phi_consts(CM)
    for h in range(4):
        for bb in range(2):
            r = A_Q + (bb * 4 + h) * 4
            t = TMP if bb == 0 else 228
            for it in phi4(r, CM, t): a(it)
            a('v_cvt_pk_bf16_f32 v%d, v%d, v%d' % (QP + 4 * h + 2 * bb, r, r + 1))
            a('v_cvt_pk_bf16_f32 v%d, v%d, v%d' % (QP + 4 * h + 2 * bb + 1, r + 2, r + 3))
        a('v_permlane16_swap_b32 v%d, v%d' % (QP + 4 * h, QP + 4 * h + 2))
        a('v_permlane16_swap_b32 v%d, v%d' % (QP + 4 * h + 1, QP + 4 * h + 3))
    a('v_and_b32 v16, 3, v1')
    a('v_bfe_u32 v17, v1, 3, 1')
    a('v_lshl_add_u32 v16, v17, 2, v16')
    a('v_bfe_u32 v17, v1, 2, 1')
    a('v_lshl_add_u32 v16, v17, 3, v16')
    a('v_bfe_u32 v17, v1, 4, 1')
    a('v_cmp_eq_u32 vcc, 1, v17')
    a('v_cndmask_b32_e64 v16, v16, 16, vcc')
    a('v_lshlrev_b32 v16, 6, v16')
    a('v_lshrrev_b32 v17, 5, v1')
    a('v_lshl_add_u32 v19, v17, 5, v16')
    a('v_lshlrev_b32 v18, 4, v1')
    a('s_lshl_b32 s52, s28, 2'); a('s_add_u32 s52, s52, s29'); a('s_mul_i32 s52, s52, %d' % KVS); a('s_add_u32 s52, s52, 0x%x' % KV)
    a('s_mul_i32 s53, s29, %d' % KVS)
    stamp('A_epiq')
    a('s_cmp_eq_u32 s29, 0')
    a('s_cbranch_scc0 L_A_nopoll')
    a('s_lshl_b32 s54, s28, 8')
    a('v_mov_b32 v16, s54')
    spin_wait('v16', S_WS, 16, 'cnt16', 17)
    a.label('L_A_nopoll')
    a('s_barrier')
    stamp('A_sync16')
    a('s_add_u32 m0, s53, %d' % KVL)
    a('buffer_load_dwordx4 v18, %s, s52 offen sc1 lds' % srd(SRD_WS))
    a('s_add_u32 m0, s53, %d' % (KVL + 1024))
    a('s_add_u32 s52, s52, 1024')
    a('s_mov_b64 exec, 0xf')
    a('buffer_load_dwordx4 v18, %s, s52 offen sc1 lds' % srd(SRD_WS))
    a('s_mov_b64 exec, -1')
    a('s_lshl_b32 s52, s28, 12')
    a('v_lshlrev_b32 v16, 4, v1'); a('v_add_u32 v16, s52, v16')
    a('s_lshl_b32 s53, s27, 17'); a('s_lshl_b32 s54, s29, 15'); a('s_add_u32 s53, s53, s54'); a('s_add_u32 s53, s53, 0x%x' % CH)
    a('s_waitcnt vmcnt(0)')
    a('s_barrier')
    for h in range(4):
        a('ds_read_b128 %s, v19 offset:%d' % (vr(KZ + 8 * h, 4), KVL + h * KVS))
        a('ds_read_b128 %s, v19 offset:%d' % (vr(KZ + 8 * h + 4, 4), KVL + h * KVS + 16))
    for h in range(4):
        a('s_waitcnt lgkmcnt(%d)' % (6 - 2 * h))
        for q in range(4):
            a('v_cvt_pk_bf16_f32 v%d, v%d, v%d' % (AOP + 4 * h + q, KZ + 8 * h + 2 * q, KZ + 8 * h + 2 * q + 1))
        a('v_mfma_f32_32x32x16_bf16 %s, %s, %s, 0' % (vr(D1 + 16 * h, 16), vr(AOP + 4 * h, 4), vr(QP + 4 * h, 4)))
    a('s_mov_b32 s58, 0x%x' % fbits(1e-6))
    for h in range(4):
        d = D1 + 16 * h
        a('v_add_f32 v%d, s58, v%d' % (d + 8, d + 8))
        a('v_rcp_f32 v%d, v%d' % (d + 8, d + 8))
        for q in range(4):
            a('v_pk_mul_f32 %s, %s, %s op_sel_hi:[1,0]' % (vr(d + 2 * q, 2), vr(d + 2 * q, 2), vr(d + 8, 2)))
        for q in range(4):
            a('v_cvt_pk_bf16_f32 v%d, v%d, v%d' % (OP + 4 * h + q, d + 2 * q, d + 2 * q + 1))
        a('buffer_store_dwordx4 %s, v16, %s, s53 offen offset:%d sc1' % (vr(OP + 4 * h, 4), srd(SRD_WS), h * 1024))
    stamp('A_o')

def phase2():
    a.label('L_P2')
    make_srd(SRD_OUT, S_OUT, 2048 * 2048)
    a('s_lshl_b32 s52, s26, 4'); a('s_add_u32 s52, s52, s27'); a('s_lshl_b32 s52, s52, 2'); a('s_add_u32 s52, s52, s29')
    a('s_lshl_b32 s52, s52, 15'); a('s_add_u32 s52, s52, 0x%x' % CH)
    a('v_lshlrev_b32 v2, 4, v1')
    a('v_lshrrev_b32 v3, 5, v1')
    a('v_lshlrev_b32 v3, 10, v3')
    a('v_bfe_u32 v4, v1, 2, 2')
    a('v_lshl_add_u32 v3, v4, 7, v3')
    a('v_bfe_u32 v4, v1, 4, 1')
    a('v_lshl_add_u32 v3, v4, 5, v3')
    a('v_and_b32 v4, 3, v1')
    a('v_lshl_add_u32 v3, v4, 3, v3')
    a('v_bfe_u32 v4, v1, 3, 1')
    a('v_lshlrev_b32 v4, 6, v4')
    a('v_xor_b32 v3, v3, v4')
    a('v_add_u32 v3, %d, v3' % WO_BASE)
    a('v_xor_b32 v4, 64, v3')
    WF = [20, 28, 36]; ACC = 48
    def reads(h, F):
        return ['ds_read_b64_tr_b16 %s, v%d offset:%d' % (vr(F + 4 * tl + 2 * jj, 2), 3 + tl, h * 2048 + jj * 512)
                for tl in range(2) for jj in range(2)]
    a('s_barrier')
    stamp('P2_go')
    def load(h):
        t = ''
        if h % 4 == 0 and h: t = 's_add_u32 s52, s52, 4096\n'
        return t + 'buffer_load_dwordx4 %s, v2, %s, s52 offen offset:%d sc1' % (ar(4 * h, 4), srd(SRD_WS), (h % 4) * 1024)
    PRE = OPT['p2pre']
    for h in range(PRE): a(load(h))
    for it in reads(0, WF[0]) + reads(1, WF[1]): a(it)
    issued = PRE
    for h in range(32):
        F = WF[h % 3]
        nxt = reads(h + 2, WF[(h + 2) % 3]) if h + 2 < 32 else []
        for it in nxt: a(it)
        outstanding = (8 if h + 2 < 32 else (4 if h + 1 < 32 else 0))
        a('s_waitcnt vmcnt(%d) lgkmcnt(%d)' % (issued - 1 - h, outstanding))
        for tl in range(2):
            c = vr(ACC + 16 * tl, 16) if h else '0'
            a('v_mfma_f32_32x32x16_bf16 %s, %s, %s, %s' % (vr(ACC + 16 * tl, 16), vr(F + 4 * tl, 4), ar(4 * h, 4), c))
            if tl == 0 and issued < 32:
                a(load(issued)); issued += 1
    stamp('P2_gemm')
    PK = 84
    a('v_and_b32 v5, 31, v1')
    a('v_and_b32 v6, 7, v5')
    a('v_lshlrev_b32 v7, 7, v5')
    a('s_lshl_b32 s52, s29, 12')
    a('v_add_u32 v7, s52, v7')
    a('v_lshrrev_b32 v8, 5, v1')
    a('v_lshl_add_u32 v7, v8, 3, v7')
    for g in range(8):
        a('v_xor_b32 v9, %d, v6' % g)
        a('v_lshl_add_u32 v%d, v9, 4, v7' % (116 + g))
    for tl in range(2):
        for q in range(4):
            d = ACC + 16 * tl + 4 * q; p = PK + 2 * (tl * 4 + q)
            a('v_cvt_pk_bf16_f32 v%d, v%d, v%d' % (p, d, d + 1))
            a('v_cvt_pk_bf16_f32 v%d, v%d, v%d' % (p + 1, d + 2, d + 3))
            a('ds_write_b64 v%d, %s' % (116 + tl * 4 + q, vr(p, 2)))
    a('v_lshrrev_b32 v5, 3, v1')
    a('v_and_b32 v6, 7, v1')
    a('v_xor_b32 v8, v5, v6')
    a('v_lshlrev_b32 v8, 4, v8')
    a('v_lshl_add_u32 v8, v5, 7, v8')
    a('v_add_u32 v8, s52, v8')
    a('v_lshlrev_b32 v9, s75, v5')
    a('v_lshl_add_u32 v9, v6, 4, v9')
    a('s_lshl_b32 s53, s28, 7'); a('s_add_u32 s74, s74, s53')
    a('s_lshl_b32 s54, 8, s75')
    a('s_waitcnt lgkmcnt(0)')
    for it in range(4):
        a('ds_read_b128 %s, v8 offset:%d' % (vr(100 + 4 * it, 4), it * 1024))
    for it in range(4):
        a('s_waitcnt lgkmcnt(%d)' % (3 - it))
        a('buffer_store_dwordx4 %s, v9, %s, s74 offen' % (vr(100 + 4 * it, 4), srd(SRD_OUT)))
        if it < 3: a('s_add_u32 s74, s74, s54')
    if OPT['stamps']:
        a('s_waitcnt vmcnt(0)')
        stamp('end')
        a('s_waitcnt lgkmcnt(0)')
        a('s_lshl_b32 s52, s2, 2'); a('s_add_u32 s52, s52, s29'); a('s_lshl_b32 s52, s52, 7'); a('s_add_u32 s52, s52, 0x%x' % STAMP)
        a('v_lshlrev_b32 v2, 2, v1')
        a('v_mov_b32 v3, 0')
        for i in range(13):
            a('v_cmp_eq_u32 vcc, %d, v1' % i)
            a('v_mov_b32 v4, s%d' % (76 + 2 * i))
            a('v_cndmask_b32 v3, v3, v4, vcc')
        a('s_mov_b64 exec, 0x1fff')
        a('buffer_store_dword v3, v2, %s, s52 offen' % srd(SRD_WS))
    a('s_endpgm')

hdr = open('concat_heads__linear_attn_block__sliding_local_dilated__prompt.s.ref').read().split('\n')
for l in hdr:
    if l.startswith('; @launch'): break
    a(l)
if OPT['empty2']:
    a('; @launch kernel=%s grid=(256,1,1) block=(256,1,1) lds=%d' % (KNAME, LDS_BYTES))
    for i in range(OPT['empty2']):
        a('; @launch kernel=empty_kernel grid=(256,1,1) block=(256,1,1) lds=0')
else:
    a('; @launch grid=(256,1,1) block=(256,1,1) lds=%d' % LDS_BYTES)
a('.amdgcn_target "amdgcn-amd-amdhsa--gfx950"')
if OPT['pf']: OPT['pf'] = 6
kernel_begin(a, KNAME)
body_start = len(a.lines)
prologue()
base = NSTAMP[0]
a_path()
NSTAMP[0] = base
b_path()
NSTAMP[0] = 10
phase2()
a.label('L_kend')
body = fix_hazards(a.lines[body_start:], verbose=True)
a.lines = a.lines[:body_start] + body
if OPT['empty2']:
    kernel_begin(a, 'empty_kernel')
    a('s_endpgm')
kernel_desc(a, KNAME, 384, 102, 256)
if OPT['empty2']:
    kernel_desc(a, 'empty_kernel', 64, 32)
open(OPT['out'], 'w').write(a.text())
print('lines', len(a.lines))
```

```python
import sys, struct
from asmlib import *

KNAME = 'concat_heads__linear_attn_block__sliding_local_dilated__prompt_kernel'
OPT = dict(stamps=0, dpf=0, prostamps=0, out='k.s', spin=1 << 20, span=0, empty2=0, pf=1, p2pre=8,
           b_nodma=0, b_noread=0, b_nomfma=0)
for arg in sys.argv[1:]:
    k, v = arg.split('=')
    OPT[k] = int(v, 0) if k not in ('out',) else v

def fbits(x): return struct.unpack('<I', struct.pack('<f', x))[0]
LOG2E = 1.4426950408889634
NEG = -1.0e30

CNT16 = 0x0000; CNT8 = 0x1000; KV = 0x4000; KVS = 1280; CH = 0x100000; STAMP = 0x600000
WS_SIZE = 0x800000
NZERO_WG = 16
WO_BASE = 98304
B_SLOT = 43008
A_SLOT = 16384
A_SCR = 81920
A_ZSCR = 32768
LDS_BYTES = 163840

S_AX, S_AW, S_AO, S_BX, S_BW, S_BO, S_OUT, S_DBG, S_WS = 8, 10, 12, 14, 16, 18, 20, 22, 24
sBR, sRB, sHG, sWV = 26, 27, 28, 29
SRD_X, SRD_W, SRD_O, SRD_WS, SRD_OUT = 32, 36, 40, 44, 48
def srd(r): return 's[%d:%d]' % (r, r + 3)
def vr(r, n=1): return 'v%d' % r if n == 1 else 'v[%d:%d]' % (r, r + n - 1)
def ar(r, n=1): return 'a%d' % r if n == 1 else 'a[%d:%d]' % (r, r + n - 1)

a = Asm()
NSTAMP = [0]
def stamp(name, pro=False):
    if not OPT['stamps']: return
    if OPT['prostamps']:
        if not (pro or name in ('start', 'A_issued', 'B_issued', 'A_first', 'B_first', 'end', 'A_pass1', 'B_gemm')): return
        if name == 'end': NSTAMP[0] = 12
    elif pro: return
    i = NSTAMP[0]; NSTAMP[0] += 1
    assert i < 13
    a('s_memtime s[%d:%d]   ; stamp %s' % (76 + 2 * i, 77 + 2 * i, name))

class VM:
    def __init__(self): self.q = []
    def issue(self, tag, n=1): self.q += [tag] * n
    def count_after(self, tag):
        if tag not in self.q: return None
        idx = max(i for i, t in enumerate(self.q) if t == tag)
        return len(self.q) - 1 - idx
    def wait(self, tag):
        n = self.count_after(tag)
        if n is None: return
        assert n <= 63
        a('s_waitcnt vmcnt(%d)   ; %s' % (n, tag))
        self.q = self.q[len(self.q) - n:] if n else []
    def wait_all_of(self, tags):
        ns = [(self.count_after(t), t) for t in tags if self.count_after(t) is not None]
        if ns: self.wait(min(ns)[1])
    def all(self):
        a('s_waitcnt vmcnt(0)'); self.q = []

def make_srd(r, sp, size):
    a('s_mov_b32 s%d, s%d' % (r, sp)); a('s_mov_b32 s%d, s%d' % (r + 1, sp + 1))
    a('s_mov_b32 s%d, 0x%x' % (r + 2, size)); a('s_mov_b32 s%d, 0x20000' % (r + 3))

def weave(main, streams):
    slots = [[] for _ in main]; tail = []
    for items, first, step in streams:
        for k, it in enumerate(items):
            pos = int(first + k * step)
            (slots[pos] if pos < len(main) else tail).append(it)
    def em(it):
        if isinstance(it, tuple):
            a(it[0]); it[1]()
        else: a(it)
    for m, sl in zip(main, slots):
        em(m)
        for it in sl: em(it)
    for it in tail: em(it)

def spin_wait(vaddr, base, cmp_lit, name, vd):
    L = 'L_spin_' + name; D = 'L_spun_' + name
    a('s_mov_b32 s56, 0')
    a.label(L)
    a('global_load_dword v%d, %s, s[%d:%d] sc1' % (vd, vaddr, base, base + 1))
    a('s_waitcnt vmcnt(0)')
    a('v_readfirstlane_b32 s57, v%d' % vd)
    a('s_add_u32 s56, s56, 1')
    a('s_cmp_ge_u32 s56, 0x%x' % OPT['spin'])
    a('s_cbranch_scc1 %s' % D)
    a('s_cmp_lt_u32 s57, %d' % cmp_lit)
    a('s_cbranch_scc1 %s' % L)
    a.label(D)

def init_load(vz, vd):
    return 'v_mov_b32 v%d, 0\nglobal_load_dword v%d, v%d, s[%d:%d] sc1' % (vz, vd, vz, S_DBG, S_DBG + 1)
def init_check(name, vz, vd):
    a('v_readfirstlane_b32 s57, v%d' % vd)
    a('s_cmp_ge_u32 s57, %d' % NZERO_WG)
    a('s_cbranch_scc1 L_initok_%s' % name)
    spin_wait('v%d' % vz, S_DBG, NZERO_WG, 'init_' + name, vd)
    a.label('L_initok_%s' % name)

def prologue():
    a('s_cmp_ge_u32 s2, 256')
    a('s_cbranch_scc0 L_go')
    a('s_endpgm')
    a.label('L_go')
    a('s_load_dwordx16 s[8:23], s[0:1], 0')
    a('s_load_dwordx2 s[24:25], s[0:1], 64')
    stamp('start')
    if OPT['span']:
        a('s_memrealtime s[96:97]')
        a('s_memtime s[98:99]')
    a('v_and_b32 v1, 63, v0')
    a('v_lshrrev_b32 v2, 6, v0')
    a('s_lshr_b32 s26, s2, 2')
    a('v_readfirstlane_b32 s29, v2')
    a('s_and_b32 s26, s26, 1')
    a('s_and_b32 s52, s2, 3')
    a('s_lshr_b32 s53, s2, 3')
    a('s_lshr_b32 s27, s53, 3')
    a('s_lshl_b32 s52, s52, 2')
    a('s_add_u32 s27, s27, s52')
    a('s_and_b32 s28, s53, 7')
    if OPT['pf']:
        a('s_lshl_b32 s56, s53, 2'); a('s_add_u32 s56, s56, s29')
        a('s_cmp_ge_u32 s56, (L_kend-L_pf_pc)>>10')
        a('s_cbranch_scc1 L_nopf')
        a('s_getpc_b64 s[54:55]')
        a.label('L_pf_pc')
        a('s_lshl_b32 s56, s56, 10')
        a('v_lshlrev_b32 v3, 4, v1')
        a('v_add_u32 v3, s56, v3')
        a('global_load_dwordx4 v[240:243], v3, s[54:55]')
        a.label('L_nopf')
    a('v_lshrrev_b32 v16, 3, v1')
    a('s_lshl_b32 s52, s29, 4')
    a('v_add_u32 v17, s52, v16')
    a('v_mul_u32_u24 v17, 3072, v17')
    a('v_lshrrev_b32 v18, 4, v1')
    a('v_and_b32 v19, 1, v18')
    a('v_lshlrev_b32 v19, 1, v19')
    a('v_and_b32 v20, 7, v1')
    a('v_xor_b32 v19, v19, v20')
    a('v_lshlrev_b32 v19, 4, v19')
    a('s_lshl_b32 s52, s28, 7')
    a('v_add3_u32 v7, v17, v19, s52')
    a('v_xor_b32 v8, 64, v7')
    a('v_add_u32 v8, %d, v8' % (8 * 3072))
    stamp('prekarg', True)
    a('s_waitcnt lgkmcnt(0)')
    stamp('karg', True)
    make_srd(SRD_WS, S_WS, WS_SIZE)
    a('s_cmp_ge_u32 s2, %d' % NZERO_WG)
    a('s_cbranch_scc1 L_nozero')
    a('v_mov_b32 v24, 0'); a('v_mov_b32 v25, 0'); a('v_mov_b32 v26, 0'); a('v_mov_b32 v27, 0')
    a('v_lshlrev_b32 v22, 4, v1')
    a('s_lshl_b32 s52, s2, 12')
    a('s_lshl_b32 s53, s29, 10')
    a('s_add_u32 s52, s52, s53')
    a('buffer_store_dwordx4 v[24:27], v22, %s, s52 offen sc1' % srd(SRD_WS))
    a.label('L_nozero')
    a('s_cmp_eq_u32 s26, 0')
    a('s_cbranch_scc0 L_B')

def wfrag_base_items():
    return ['v_lshlrev_b32 v9, 10, v18', 'v_bfe_u32 v21, v1, 2, 2', 'v_lshl_add_u32 v9, v21, 7, v9',
            'v_and_b32 v21, 3, v1', 'v_lshl_add_u32 v9, v21, 3, v9', 'v_bfe_u32 v21, v1, 3, 2', 'v_lshl_add_u32 v9, v21, 5, v9']

def data_prefetch(vm=None):
    m = OPT['dpf']
    if not m: return 0
    n = 0
    a('s_lshr_b32 s57, s2, 3'); a('s_lshl_b32 s57, s57, 2'); a('s_add_u32 s57, s57, s29')
    a('v_lshlrev_b32 v246, 7, v1')
    if m & 1:
        skip = 4096 if (m & 8) else 0
        a('s_lshl_b32 s58, s57, 13'); a('s_add_u32 s58, s58, %d' % (skip * 128))
        a('buffer_load_dword v247, v246, %s, s58 offen' % srd(SRD_W)); n += 1
        if not (m & 8):
            a('s_lshl_b32 s58, s57, 12'); a('s_add_u32 s58, s58, %d' % (8192 * 128))
            a('s_mov_b64 exec, 0xffffffff')
            a('buffer_load_dword v247, v246, %s, s58 offen' % srd(SRD_W)); n += 1
            a('s_mov_b64 exec, -1')
    if m & 2:
        a('s_and_b32 s58, s2, 3'); a('s_lshl_b32 s58, s58, 19'); a('s_lshl_b32 s56, s57, 12'); a('s_add_u32 s58, s58, s56')
        a('s_mov_b64 exec, 0xffffffff')
        a('buffer_load_dword v247, v246, %s, s58 offen' % srd(SRD_X)); n += 1
        a('s_mov_b64 exec, -1')
    if m & 4:
        a('s_lshl_b32 s58, s57, 12')
        a('s_mov_b64 exec, 0xffffffff')
        a('buffer_load_dword v247, v246, %s, s58 offen' % srd(SRD_O)); n += 1
        a('s_mov_b64 exec, -1')
    if vm: vm.issue('pf', n)
    return n

def zero_signal(vm_after):
    L = a.newlabel('L_nosig')
    a('s_cmp_ge_u32 s2, %d' % NZERO_WG)
    a('s_cbranch_scc1 %s' % L)
    a('s_waitcnt vmcnt(%d)' % vm_after)
    a('s_barrier')
    a('s_cmp_eq_u32 s29, 0')
    a('s_cbranch_scc0 %s' % L)
    a('v_mov_b32 v244, 0'); a('v_mov_b32 v245, 1')
    a('s_mov_b64 exec, 1')
    a('global_atomic_add v244, v245, s[%d:%d] sc1' % (S_DBG, S_DBG + 1))
    a('s_mov_b64 exec, -1')
    a.label(L)

def wo_dma_list(lo, hi, voff, stmp):
    L = []
    for ii in range(lo, hi):
        L.append('s_add_u32 m0, s70, 0x%x\ns_mov_b32 s%d, 0x%x\nbuffer_load_dwordx4 v%d, %s, s%d offen lds' %
                 (ii * 1024, stmp, ii * 8192, voff, srd(SRD_O), stmp))
    return L

def wo_voff_items(vdst, vt, st=52):
    return ['v_lshrrev_b32 v%d, 3, v1' % vt,
            's_lshl_b32 s%d, s29, 7' % st,
            'v_add_u32 v%d, s%d, v%d' % (vt, st, vt),
            'v_lshlrev_b32 v%d, 10, v%d' % (vt, vt),
            'v_bfe_u32 v%d, v1, 4, 1' % (vt + 1),
            'v_lshlrev_b32 v%d, 2, v%d' % (vt + 1, vt + 1),
            'v_and_b32 v%d, 7, v1' % (vt + 2),
            'v_xor_b32 v%d, v%d, v%d' % (vt + 1, vt + 1, vt + 2),
            'v_lshlrev_b32 v%d, 4, v%d' % (vt + 1, vt + 1),
            's_lshl_b32 s%d, s28, 7' % st,
            'v_add3_u32 v%d, v%d, v%d, s%d' % (vdst, vt, vt + 1, st),
            's_lshl_b32 s70, s29, 14',
            's_add_u32 s70, s70, 0x%x' % WO_BASE]

def publish_signal(br):
    a('s_waitcnt vmcnt(0)')
    a('s_barrier')
    stamp('published')
    a('s_lshl_b32 s59, s27, 8')
    a('s_add_u32 s59, s59, 0x%x' % (CNT8 + br * 16 * 256))
    a('s_cmp_eq_u32 s29, 0')
    a('s_cbranch_scc0 L_pub_%d' % br)
    a('v_mov_b32 v16, s59'); a('v_mov_b32 v18, 1')
    a('s_mov_b64 exec, 1')
    a('global_atomic_add v16, v18, s[%d:%d] sc1' % (S_WS, S_WS + 1))
    a('s_mov_b64 exec, -1')
    spin_wait('v16', S_WS, 8, 'cnt8_%d' % br, 17)
    a.label('L_pub_%d' % br)

B_F = [dict(x=20, w=56), dict(x=68, w=104)]
B_Q, B_K, B_V = 116, 148, 184
B_CPREV, B_CCUR, B_CH0, B_CH1, B_ONES = 220, 224, 228, 232, 236

def b_dma_w(base, lit=0):
    L = []
    for seg in (1, 2, 0):
        for ii in range(2):
            L.append('s_add_u32 m0, %s, 0x%x\nbuffer_load_dwordx4 v%d, %s, s%d offen lds' %
                     (base, lit + seg * 8192 + ii * 1024, 7 + ii, srd(SRD_W), 61 + seg))
    L[-1] += '\ns_add_u32 s61, s61, 0x30000\ns_add_u32 s62, s62, 0x30000\ns_add_u32 s63, s63, 0x30000'
    return L
def b_dma_x(bx, bh, lit=0):
    L = []
    for ii in range(4):
        L.append('s_add_u32 m0, %s, 0x%x\nbuffer_load_dwordx4 v%d, %s, s60 offen lds' % (bx, lit + ii * 1024, 2 + ii, srd(SRD_X)))
    L.append('s_add_u32 m0, %s, 0x%x\ns_mov_b64 exec, 0xffffffff\nbuffer_load_dwordx4 v6, %s, s60 offen lds\ns_mov_b64 exec, -1\ns_add_u32 s60, s60, 128' %
             (bh, lit, srd(SRD_X)))
    return L

def b_reads(F, vx, vw, kk):
    L = []
    if OPT['b_noread']: return L
    for seg in range(3):
        for jj in range(2):
            L.append('ds_read_b64_tr_b16 %s, v%d offset:%d' % (vr(F['w'] + seg * 4 + jj * 2, 2), vw, seg * 8192 + kk * 4096 + jj * 512))
    for t in range(9):
        L.append('ds_read_b128 %s, v%d offset:%d' % (vr(F['x'] + 4 * t, 4), vx, t * 2048))
    return L

def b_mfmas(F):
    L = []
    if OPT['b_nomfma']: return ['s_nop 0'] * 26
    for t in range(9):
        x = vr(F['x'] + 4 * t, 4)
        if t < 8:
            L.append('v_mfma_f32_16x16x32_bf16 %s, %s, %s, %s' % (vr(B_Q + 4 * t, 4), vr(F['w'], 4), x, vr(B_Q + 4 * t, 4)))
        L.append('v_mfma_f32_16x16x32_bf16 %s, %s, %s, %s' % (vr(B_K + 4 * t, 4), vr(F['w'] + 4, 4), x, vr(B_K + 4 * t, 4)))
        L.append('v_mfma_f32_16x16x32_bf16 %s, %s, %s, %s' % (vr(B_V + 4 * t, 4), x, vr(F['w'] + 8, 4), vr(B_V + 4 * t, 4)))
    return L

def b_stage(dma_x, dma_w, vmn, last=False, loop=None):
    nd = OPT['b_nodma']
    misc0 = []
    if not last:
        misc0 += ['v_add_u32 v15, s65, v10', 'v_add_u32 v16, s65, v12']
    if dma_w: misc0 += ['s_add_u32 s69, s64, s73']
    dx = b_dma_x('s67', 's68') if (dma_x and not nd) else []
    pre = ['s_add_u32 s67, s66, s71\ns_add_u32 s68, s66, s72'] if dma_x else []
    weave(b_mfmas(B_F[0]), [(pre, 0, 1), (b_reads(B_F[1], 13, 14, 1), 0, 1), (dx, 3, 5), (misc0, 16, 2)])
    a('s_waitcnt lgkmcnt(0)')
    if vmn is not None: a('s_waitcnt vmcnt(%d)' % vmn)
    a('s_barrier')
    rd = b_reads(B_F[0], 15, 16, 0) if not last else []
    dw = b_dma_w('s69') if (dma_w and not nd) else []
    misc1 = []
    if not last:
        misc1 = ['v_add_u32 v13, s65, v11', 'v_mov_b32 v14, v16',
                 's_mov_b32 s53, s64\ns_mov_b32 s64, s65', 's_mov_b32 s65, s66\ns_mov_b32 s66, s53']
    if loop: misc1 += ['s_add_u32 s74, s74, 1\ns_cmp_lt_u32 s74, %d' % loop]
    weave(b_mfmas(B_F[1]), [(rd, 0, 1), (dw, 2, 4), (misc1, 15 if not dw else 23, 2 if not dw else 0)])
    if not last: a('s_waitcnt lgkmcnt(0)')

def b_path():
    a.label('L_B')
    make_srd(SRD_X, S_BX, 2048 * 1024)
    make_srd(SRD_W, S_BW, 512 * 3072)
    a('s_lshl_b32 s71, s29, 12')
    a('s_lshl_b32 s72, s29, 9'); a('s_add_u32 s72, s72, 16384')
    a('s_lshl_b32 s73, s29, 11'); a('s_add_u32 s73, s73, 18432')
    a('s_mov_b32 s60, 0'); a('s_mov_b32 s61, 0'); a('s_mov_b32 s62, 1024'); a('s_mov_b32 s63, 2048')
    stamp('B_predma', True)
    for it in b_dma_w('s73', 0): a(it)
    a('s_lshl_b32 s52, s27, 7')
    a('s_and_b32 s53, s29, 1')
    a('s_lshr_b32 s54, s29, 1')
    a('s_lshl_b32 s55, s53, 6')
    a('s_add_u32 s55, s55, s54')
    a('s_add_u32 s55, s55, s52')
    a('s_lshl_b32 s55, s55, 10')
    a('v_lshlrev_b32 v17, 11, v16')
    a('v_xor_b32 v19, v20, v18')
    a('v_lshlrev_b32 v19, 4, v19')
    a('v_add3_u32 v2, v17, v19, s55')
    a('v_xor_b32 v3, 64, v2')
    a('v_add_u32 v4, 32768, v2')
    a('v_add_u32 v5, 49152, v3')
    a('v_add_u32 v3, 16384, v3')
    a('s_lshl_b32 s55, s53, 3')
    a('s_add_u32 s55, s55, s54')
    a('s_add_u32 s55, s55, s52')
    a('s_sub_u32 s55, s55, 16')
    a('s_lshl_b32 s55, s55, 10')
    a('s_lshl_b32 s56, s29, 1')
    a('v_add_u32 v19, s56, v18')
    a('v_and_b32 v19, 7, v19')
    a('v_xor_b32 v19, v19, v20')
    a('v_lshlrev_b32 v19, 4, v19')
    a('v_add3_u32 v6, v17, v19, s55')
    for it in b_dma_x('s71', 's72', 0): a(it)
    stamp('B_dma0', True)
    make_srd(SRD_O, S_BO, 512 * 1024)
    npf = data_prefetch()
    dm = b_dma_w('s73', B_SLOT) + b_dma_x('s71', 's72', B_SLOT) + b_dma_w('s73', 2 * B_SLOT)
    setup = []
    setup += wfrag_base_items()
    setup += ['v_and_b32 v21, 15, v1', 'v_lshlrev_b32 v10, 7, v21', 'v_bfe_u32 v22, v1, 1, 3', 'v_xor_b32 v22, v22, v18',
              'v_lshl_add_u32 v10, v22, 4, v10', 'v_xor_b32 v11, 64, v10',
              's_lshl_b32 s57, s29, 5', 'v_xor_b32 v12, s57, v9', 'v_add_u32 v12, 18432, v12']
    setup += ['v_mov_b32 v%d, 0' % r for r in range(B_Q, B_V + 36)]
    setup += ['s_mov_b32 s58, 0x%x' % fbits(NEG), 's_cmp_eq_u32 s27, 0\ns_cselect_b32 s57, s58, 0', 'v_mov_b32 v22, s58', 'v_lshlrev_b32 v23, 2, v18']
    for r in range(4):
        setup += ['v_add_u32 v24, %d, v23' % r, 'v_sub_u32 v25, v24, v21', 'v_sub_u32 v26, v21, v24',
                  'v_cmp_le_i32 vcc, 9, v25\nv_cndmask_b32_e64 v%d, v22, 0, vcc' % (B_CPREV + r),
                  'v_cmp_ge_u32 vcc, 7, v26\nv_cndmask_b32_e64 v%d, v22, 0, vcc' % (B_CCUR + r),
                  'v_cmp_le_i32 vcc, 1, v25\nv_cmp_ge_u32 s[54:55], 7, v24\ns_and_b64 vcc, vcc, s[54:55]\nv_cndmask_b32_e64 v%d, v22, 0, vcc' % (B_CH0 + r),
                  'v_min_f32 v%d, s57, v%d' % (B_CH0 + r, B_CH0 + r),
                  'v_min_f32 v%d, s57, v%d' % (B_CH1 + r, B_CPREV + r),
                  'v_mov_b32 v%d, 0x3f803f80' % (B_ONES + r)]
    setup += wo_voff_items(17, 24)
    step = len(setup) / float(len(dm) + 1)
    weave(setup, [(dm, 2, step)])
    stamp('B_issued')
    zero_signal(28 + npf)
    a('s_mov_b32 s64, 0'); a('s_mov_b32 s65, %d' % B_SLOT); a('s_mov_b32 s66, %d' % (2 * B_SLOT))
    a('v_mov_b32 v13, v11'); a('v_mov_b32 v14, v12')
    a('s_mov_b32 s74, 0')
    a('s_waitcnt vmcnt(%d)' % (17 + npf))
    a('s_barrier')
    stamp('B_first')
    for it in b_reads(B_F[0], 10, 12, 0): a(it)
    a('s_waitcnt lgkmcnt(0)')
    a.label('L_Bloop')
    b_stage(True, True, 11, loop=5)
    a('s_cbranch_scc1 L_Bloop')
    b_stage(True, False, 11)
    b_stage(False, False, 0)
    b_stage(False, False, None, last=True)
    stamp('B_gemm')
    b_attention()
    a('s_lshl_b32 s52, s27, 7')
    a('s_and_b32 s53, s29, 1'); a('s_lshl_b32 s53, s53, 6')
    a('s_lshr_b32 s54, s29, 1')
    a('s_add_u32 s52, s52, s53'); a('s_add_u32 s52, s52, s54')
    a('s_lshl_b32 s74, s52, 11'); a('s_add_u32 s74, s74, 1024')
    a('s_mov_b32 s75, 12')
    publish_signal(1)

def b_attention():
    QP, KP, LV = 20, 36, (54, 64)
    S = 116; MX = 180; T = 188; P = 74; OP = 20
    wo = wo_dma_list(0, 16, 17, 59)
    L = []
    for t in range(8):
        L.append('v_cvt_pk_bf16_f32 v%d, v%d, v%d' % (QP + 2 * t, B_Q + 4 * t, B_Q + 4 * t + 1))
        L.append('v_cvt_pk_bf16_f32 v%d, v%d, v%d' % (QP + 2 * t + 1, B_Q + 4 * t + 2, B_Q + 4 * t + 3))
    for t in range(9):
        L.append('v_cvt_pk_bf16_f32 v%d, v%d, v%d' % (KP + 2 * t, B_K + 4 * t, B_K + 4 * t + 1))
        L.append('v_cvt_pk_bf16_f32 v%d, v%d, v%d' % (KP + 2 * t + 1, B_K + 4 * t + 2, B_K + 4 * t + 3))
    for p in range(2):
        for k, t in enumerate([8] + [4 * p + b for b in range(4)]):
            L.append('v_cvt_pk_bf16_f32 v%d, v%d, v%d' % (LV[p] + 2 * k, B_V + 4 * t, B_V + 4 * t + 1))
            L.append('v_cvt_pk_bf16_f32 v%d, v%d, v%d' % (LV[p] + 2 * k + 1, B_V + 4 * t + 2, B_V + 4 * t + 3))
    weave(L, [([init_load(244, 245)], 0, 1), (wo[:6], 4, 8)])
    for t in range(8):
        b = t & 3; p = t >> 2
        prev = t - 1 if b > 0 else 8
        cm = B_CPREV if b > 0 else (B_CH0 if p == 0 else B_CH1)
        a('v_mfma_f32_16x16x16_bf16 %s, %s, %s, %s' % (vr(S + 8 * t, 4), vr(KP + 2 * prev, 2), vr(QP + 2 * t, 2), vr(cm, 4)))
        a('v_mfma_f32_16x16x16_bf16 %s, %s, %s, %s' % (vr(S + 8 * t + 4, 4), vr(KP + 2 * t, 2), vr(QP + 2 * t, 2), vr(B_CCUR, 4)))
    L = []
    for t in range(8):
        s = S + 8 * t
        L.append('v_max3_f32 v%d, v%d, v%d, v%d' % (MX + t, s, s + 1, s + 2))
        L.append('v_max3_f32 v%d, v%d, v%d, v%d' % (T + t, s + 3, s + 4, s + 5))
    for t in range(8):
        s = S + 8 * t
        L.append('v_max3_f32 v%d, v%d, v%d, v%d' % (MX + t, MX + t, s + 6, s + 7))
    for t in range(8):
        L.append('v_max_f32 v%d, v%d, v%d' % (MX + t, MX + t, T + t))
    weave(L, [(wo[6:9], 4, 8)])
    a('s_mov_b32 s52, 0x%x' % fbits(0.25 * LOG2E))
    a('s_mov_b32 s53, s52')
    def batch(m):
        A_, B_, C_, D_ = m, m + 1, m + 2, m + 3
        return ['v_permlane16_swap_b32 v%d, v%d' % (A_, B_),
                'v_permlane16_swap_b32 v%d, v%d' % (C_, D_),
                'v_max_f32 v%d, v%d, v%d' % (A_, A_, B_),
                'v_max_f32 v%d, v%d, v%d' % (C_, C_, D_),
                'v_permlane32_swap_b32 v%d, v%d' % (A_, C_),
                'v_max_f32 v%d, v%d, v%d' % (A_, A_, C_),
                'v_mul_f32 v%d, s52, v%d' % (A_, A_),
                'v_mov_b32 v%d, v%d' % (C_, A_),
                'v_permlane32_swap_b32 v%d, v%d' % (A_, C_),
                'v_mov_b32 v%d, v%d' % (B_, A_),
                'v_mov_b32 v%d, v%d' % (D_, C_),
                'v_permlane16_swap_b32 v%d, v%d' % (A_, B_),
                'v_permlane16_swap_b32 v%d, v%d' % (C_, D_)]
    b0 = batch(MX); b1 = batch(MX + 4)
    for x, y in zip(b0, b1):
        a(x); a(y)
    L = []
    for t in range(8):
        s = S + 8 * t
        mreg = MX + (t & ~1); sel = t & 1
        for q in range(4):
            L.append('v_pk_fma_f32 %s, %s, s[52:53], %s op_sel:[0,0,%d] op_sel_hi:[1,1,%d] neg_lo:[0,0,1] neg_hi:[0,0,1]' %
                     (vr(s + 2 * q, 2), vr(s + 2 * q, 2), vr(mreg, 2), sel, sel))
        for q in range(8):
            L.append('v_exp_f32 v%d, v%d' % (s + q, s + q))
        for q in range(4):
            L.append('v_cvt_pk_bf16_f32 v%d, v%d, v%d' % (P + 4 * t + q, s + 2 * q, s + 2 * q + 1))
    weave(L, [(wo[9:16], 4, 16)])
    for t in range(8):
        b = t & 3; p = t >> 2
        a('v_mfma_f32_16x16x32_bf16 %s, %s, %s, 0' % (vr(S + 8 * t, 4), vr(LV[p] + 2 * b, 4), vr(P + 4 * t, 4)))
        a('v_mfma_f32_16x16x32_bf16 %s, %s, %s, 0' % (vr(S + 8 * t + 4, 4), vr(B_ONES, 4), vr(P + 4 * t, 4)))
    a('s_lshl_b32 s52, s28, 2'); a('s_add_u32 s52, s52, s29'); a('s_lshl_b32 s52, s52, 10')
    a('v_lshlrev_b32 v16, 4, v1'); a('v_add_u32 v16, s52, v16')
    a('s_add_u32 s53, s27, 16'); a('s_lshl_b32 s53, s53, 17'); a('s_add_u32 s53, s53, 0x%x' % CH)
    for pr in range(4):
        for u in range(2):
            t = 2 * pr + u; s = S + 8 * t
            a('v_rcp_f32 v%d, v%d' % (s + 4, s + 4))
        for u in range(2):
            t = 2 * pr + u; s = S + 8 * t
            a('v_pk_mul_f32 %s, %s, %s op_sel_hi:[1,0]' % (vr(s, 2), vr(s, 2), vr(s + 4, 2)))
            a('v_pk_mul_f32 %s, %s, %s op_sel_hi:[1,0]' % (vr(s + 2, 2), vr(s + 2, 2), vr(s + 4, 2)))
            a('v_cvt_pk_bf16_f32 v%d, v%d, v%d' % (OP + 4 * pr + 2 * u, s, s + 1))
            a('v_cvt_pk_bf16_f32 v%d, v%d, v%d' % (OP + 4 * pr + 2 * u + 1, s + 2, s + 3))
        a('v_permlane16_swap_b32 v%d, v%d' % (OP + 4 * pr, OP + 4 * pr + 2))
        a('v_permlane16_swap_b32 v%d, v%d' % (OP + 4 * pr + 1, OP + 4 * pr + 3))
        a('s_add_u32 s54, s53, 0x%x' % (pr * 32768))
        a('buffer_store_dwordx4 %s, v16, %s, s54 offen sc1' % (vr(OP + 4 * pr, 4), srd(SRD_WS)))
    stamp('B_att')
    a('s_waitcnt vmcnt(20)')
    init_check('B', 244, 245)

A_F = [20, 52]
A_K, A_V, A_Q = 84, 116, 148
def a_xreg(ks, bb): return (ks * 2 + bb) * 4

def a_units(st):
    if st < 8: return [(1, st), (2, st)]
    q = st - 8
    return [(0, 2 * q), (0, 2 * q + 1)]

def a_dma_w(st, vm):
    L = []
    slot = (st % 5) * A_SLOT
    for u, (seg, c) in enumerate(a_units(st)):
        for ii in range(2):
            L.append(('s_add_u32 m0, s71, 0x%x\ns_mov_b32 s%d, 0x%x\nbuffer_load_dwordx4 v%d, %s, s%d offen lds' %
                      (slot + u * 8192 + ii * 1024, 52 + ii, c * 196608 + seg * 1024, 7 + ii, srd(SRD_W), 52 + ii),
                      lambda t='W%d' % st: vm.issue(t)))
    return L

def a_dma_x(c, vm):
    L = []
    for i in range(4):
        L.append(('s_add_u32 m0, s70, 0x%x\ns_mov_b32 s%d, 0x%x\nbuffer_load_dwordx4 v%d, %s, s%d offen lds' %
                  ((c % 4) * 4096 + i * 1024, 60 + (i & 1), (i >> 1) * 16384 + c * 128, 2 + (i & 1), srd(SRD_X), 60 + (i & 1)),
                  lambda t='x%d' % c: vm.issue(t)))
    return L

def a_xreads(c):
    L = []
    for kk in range(2):
        for bb in range(2):
            L.append('ds_read_b128 %s, v%d offset:%d' % (ar(a_xreg(2 * c + kk, bb), 4), 4 + kk, (c % 4) * 4096 + bb * 2048))
    return L

def a_reads(F, st, step):
    L = []
    slot = (st % 5) * A_SLOT
    for f in range(8):
        hh = f & 3; hi = f >> 2
        if st < 8: u, kk = hi, step
        else: u, kk = step, hi
        for jj in range(2):
            off = slot + u * 8192 + kk * 4096 + jj * 512
            if slot >= 4 * A_SLOT: v = 14 + hh; imm = off - 65536
            else: v = 10 + hh; imm = off
            assert 0 <= imm < 65536
            L.append('ds_read_b64_tr_b16 %s, v%d offset:%d' % (vr(F + 4 * f + 2 * jj, 2), v, imm))
    return L

def a_mfmas(F, st, step):
    L = []
    for f in range(8):
        hh = f & 3; hi = f >> 2
        for bb in range(2):
            w = vr(F + 4 * f, 4)
            if st < 8:
                ks = 2 * st + step
                x = ar(a_xreg(ks, bb), 4)
                acc = (A_K if hi == 0 else A_V) + (bb * 4 + hh) * 4
                L.append('v_mfma_f32_16x16x32_bf16 %s, %s, %s, %s' % (vr(acc, 4), x, w, vr(acc, 4)))
            else:
                c = 2 * (st - 8) + step
                ks = 2 * c + hi
                x = ar(a_xreg(ks, bb), 4)
                acc = A_Q + (bb * 4 + hh) * 4
                L.append('v_mfma_f32_16x16x32_bf16 %s, %s, %s, %s' % (vr(acc, 4), w, x, vr(acc, 4)))
    return L

def phi4(r, cm, tmp):
    L = []
    for q in range(2):
        L.append('v_pk_fma_f32 %s, %s, s[54:55], %s' % (vr(tmp + 2 * q, 2), vr(r + 2 * q, 2), vr(cm, 2)))
    for q in range(4):
        L.append('v_exp_f32_e64 v%d, v%d clamp' % (tmp + q, tmp + q))
    for q in range(4):
        L.append('v_max_f32 v%d, s58, v%d' % (r + q, r + q))
    for q in range(2):
        L.append('v_pk_add_f32 %s, %s, %s' % (vr(r + 2 * q, 2), vr(r + 2 * q, 2), vr(tmp + 2 * q, 2)))
    return L

def phi_consts(cm):
    a('s_mov_b32 s54, 0x%x' % fbits(LOG2E)); a('s_mov_b32 s55, s54')
    a('s_mov_b32 s58, 0x%x' % fbits(1e-6))
    a('v_mov_b32 v%d, 0x%x' % (cm, fbits(-1e-6 * LOG2E))); a('v_mov_b32 v%d, 0x%x' % (cm + 1, fbits(-1e-6 * LOG2E)))

def a_path():
    vm = VM()
    make_srd(SRD_X, S_AX, 2048 * 1024)
    make_srd(SRD_W, S_AW, 512 * 3072)
    a('s_lshl_b32 s71, s29, 11')
    a('s_lshl_b32 s70, s29, 14'); a('s_add_u32 s70, s70, 0x%x' % WO_BASE)
    a('s_lshl_b32 s52, s27, 7'); a('s_lshl_b32 s53, s29, 5'); a('s_add_u32 s52, s52, s53')
    a('v_add_u32 v2, s52, v16')
    a('v_lshlrev_b32 v2, 10, v2')
    a('v_xor_b32 v19, v20, v18')
    a('v_lshl_add_u32 v2, v19, 4, v2')
    a('v_xor_b32 v3, 64, v2')
    a('v_add_u32 v3, 8192, v3')
    def em(L):
        for it in L: a(it[0]); it[1]()
    stamp('A_predma', True)
    em(a_dma_x(0, vm)); em(a_dma_w(0, vm))
    stamp('A_dma0', True)
    make_srd(SRD_O, S_AO, 512 * 1024)
    data_prefetch(vm)
    dm = []
    for st in range(1, 4): dm += a_dma_x(st, vm) + a_dma_w(st, vm)
    dm += a_dma_w(4, vm)
    setup = wfrag_base_items()
    for hh in range(4):
        setup += ['v_xor_b32 v%d, %d, v9' % (10 + hh, hh << 5), 'v_add_u32 v%d, 0x10000, v%d' % (14 + hh, 10 + hh)]
    setup += ['v_and_b32 v21, 15, v1', 'v_lshlrev_b32 v4, 7, v21', 'v_bfe_u32 v22, v1, 1, 3', 'v_xor_b32 v22, v22, v18',
              'v_lshl_add_u32 v4, v22, 4, v4', 'v_add_u32 v4, s70, v4', 'v_xor_b32 v5, 64, v4']
    setup += ['v_mov_b32 v%d, 0x%x' % (r, fbits(1e-6)) for r in range(A_K, A_K + 32)]
    setup += ['v_mov_b32 v%d, 0' % r for r in range(A_V, A_V + 32)]
    setup += ['v_mov_b32 v%d, 0x%x' % (r, fbits(1e-6)) for r in range(A_Q, A_Q + 32)]
    setup += wo_voff_items(6, 180, 62)
    step = len(setup) / float(len(dm) + 1)
    weave(setup, [(dm, 2, step)])
    stamp('A_issued')
    zero_signal(len(vm.q))
    vm.wait('W0')
    a('s_barrier')
    stamp('A_first')
    for it in a_xreads(0) + a_reads(A_F[0], 0, 0): a(it)
    a('s_waitcnt lgkmcnt(0)')
    for st in range(12):
        d0 = []; d1 = []
        if st + 4 <= 7: d0 = a_dma_x(st + 4, vm)
        if st == 5: d0 = [(init_load(244, 245), lambda: vm.issue('init'))]
        if st >= 8:
            k = st - 8
            wl = wo_dma_list(4 * k, 4 * k + 4, 6, 59)
            d0 = [(x, lambda: vm.issue('wo')) for x in wl[:2]]; d1 = [(x, lambda: vm.issue('wo')) for x in wl[2:]]
        if st + 5 <= 11: d1 = a_dma_w(st + 5, vm)
        weave(a_mfmas(A_F[0], st, 0), [(a_reads(A_F[1], st, 1), 0, 1), (d0, 1, 4)])
        a('s_waitcnt lgkmcnt(0)')
        if st + 1 <= 11: vm.wait_all_of(['W%d' % (st + 1), 'x%d' % (st + 1)])
        if st == 10: vm.wait('atom')
        a('s_barrier')
        if st == 10:
            a('s_cmp_eq_u32 s29, 0')
            a('s_cbranch_scc0 L_A_nosig16')
            a('s_lshl_b32 s52, s28, 8')
            a('v_mov_b32 v180, s52'); a('v_mov_b32 v181, 1')
            a('s_mov_b64 exec, 1')
            a('global_atomic_add v180, v181, s[%d:%d] sc1' % (S_WS, S_WS + 1))
            a('s_mov_b64 exec, -1')
            a.label('L_A_nosig16')
        rd = []
        if st + 1 <= 7: rd += a_xreads(st + 1)
        if st + 1 <= 11: rd += a_reads(A_F[0], st + 1, 0)
        weave(a_mfmas(A_F[1], st, 1), [(rd, 0, 0.8), (d1, 1, 4)])
        a('s_waitcnt lgkmcnt(0)')
        if st == 7:
            stamp('A_pass1')
            a_epi_k(vm)
            stamp('A_epik')
    stamp('A_pass2')
    a_epi_q(vm)
    a('s_lshl_b32 s52, s27, 7'); a('s_lshl_b32 s53, s29, 5'); a('s_add_u32 s52, s52, s53')
    a('s_lshl_b32 s74, s52, 11')
    a('s_mov_b32 s75, 11')
    publish_signal(0)
    a('s_branch L_P2')

def a_epi_k(vm):
    KP, VP = 184, 200
    TMP = 216; CM = 220; ONES = 224; KVR = 228; ZR = 246
    phi_consts(CM)
    for q in range(4): a('v_mov_b32 v%d, 0x3f803f80' % (ONES + q))
    for h in range(4):
        for bb in range(2):
            r = A_K + (bb * 4 + h) * 4
            t = TMP if bb == 0 else 228
            for it in phi4(r, CM, t): a(it)
            a('v_cvt_pk_bf16_f32 v%d, v%d, v%d' % (KP + 4 * h + 2 * bb, r, r + 1))
            a('v_cvt_pk_bf16_f32 v%d, v%d, v%d' % (KP + 4 * h + 2 * bb + 1, r + 2, r + 3))
            r = A_V + (bb * 4 + h) * 4
            a('v_cvt_pk_bf16_f32 v%d, v%d, v%d' % (VP + 4 * h + 2 * bb, r, r + 1))
            a('v_cvt_pk_bf16_f32 v%d, v%d, v%d' % (VP + 4 * h + 2 * bb + 1, r + 2, r + 3))
        a('v_mfma_f32_16x16x32_bf16 %s, %s, %s, 0' % (vr(A_V + 4 * h, 4), vr(VP + 4 * h, 4), vr(KP + 4 * h, 4)))
        a('v_mfma_f32_16x16x32_bf16 %s, %s, %s, 0' % (vr(A_K + 4 * h, 4), vr(ONES, 4), vr(KP + 4 * h, 4)))
    a('v_lshlrev_b32 v%d, 4, v1' % TMP)
    a('s_lshl_b32 s52, s29, 12')
    a('v_add_u32 v%d, s52, v%d' % (TMP + 1, TMP))
    a('v_lshlrev_b32 v%d, 2, v1' % (TMP + 2))
    a('s_lshl_b32 s52, s29, 10')
    a('v_add_u32 v%d, s52, v%d' % (TMP + 3, TMP + 2))
    a('v_add_u32 v%d, %d, v%d' % (TMP + 1, A_SCR, TMP + 1))
    for h in range(4):
        a('ds_write_b128 v%d, %s offset:%d' % (TMP + 1, vr(A_V + 4 * h, 4), h * 1024))
        a('ds_write_b32 v%d, v%d offset:%d' % (TMP + 3, A_K + 4 * h, A_ZSCR + h * 256))
    a('s_lshl_b32 s52, s29, 10'); a('s_add_u32 s52, s52, %d' % A_SCR)
    a('v_add_u32 v%d, s52, v%d' % (TMP, TMP))
    a('s_lshl_b32 s52, s29, 8')
    a('v_add_u32 v%d, s52, v%d' % (TMP + 2, TMP + 2))
    a('s_waitcnt lgkmcnt(0)')
    a('s_barrier')
    for w in range(4):
        a('ds_read_b128 %s, v%d offset:%d' % (vr(KVR + 4 * w, 4), TMP, w * 4096))
        a('ds_read_b32 v%d, v%d offset:%d' % (ZR + w, TMP + 2, A_ZSCR + w * 1024))
    vm.wait('init')
    init_check('A', 244, 245)
    a('v_and_b32 v%d, 15, v1' % TMP); a('v_lshlrev_b32 v%d, 2, v%d' % (TMP, TMP))
    a('v_lshrrev_b32 v%d, 4, v1' % (TMP + 1))
    a('v_lshl_add_u32 v%d, v%d, 8, v%d' % (TMP + 1, TMP + 1, TMP))
    a('s_lshl_b32 s52, s28, 2'); a('s_add_u32 s52, s52, s29'); a('s_mul_i32 s52, s52, %d' % KVS); a('s_add_u32 s52, s52, 0x%x' % KV)
    a('s_waitcnt lgkmcnt(0)')
    for q in range(4):
        a('v_add_f32 v%d, v%d, v%d' % (KVR + q, KVR + q, KVR + 4 + q))
        a('v_add_f32 v%d, v%d, v%d' % (KVR + 8 + q, KVR + 8 + q, KVR + 12 + q))
    a('v_add_f32 v%d, v%d, v%d' % (ZR, ZR, ZR + 1)); a('v_add_f32 v%d, v%d, v%d' % (ZR + 2, ZR + 2, ZR + 3))
    for q in range(4):
        a('v_add_f32 v%d, v%d, v%d' % (KVR + q, KVR + q, KVR + 8 + q))
    a('v_add_f32 v%d, v%d, v%d' % (ZR, ZR, ZR + 2))
    for q in range(4):
        a('buffer_atomic_add_f32 v%d, v%d, %s, s52 offen offset:%d' % (KVR + q, TMP + 1, srd(SRD_WS), q * 64)); vm.issue('atom')
    a('s_mov_b64 exec, 0xffff')
    a('buffer_atomic_add_f32 v%d, v%d, %s, s52 offen offset:1024' % (ZR, TMP, srd(SRD_WS))); vm.issue('atom')
    a('s_mov_b64 exec, -1')

def a_epi_q(vm):
    QP = 20; TMP = 216; CM = 220; KZ = 36; AOP = 68; D1 = 84; OP = 184
    KVL = 0
    phi_consts(CM)
    for h in range(4):
        for bb in range(2):
            r = A_Q + (bb * 4 + h) * 4
            t = TMP if bb == 0 else 228
            for it in phi4(r, CM, t): a(it)
            a('v_cvt_pk_bf16_f32 v%d, v%d, v%d' % (QP + 4 * h + 2 * bb, r, r + 1))
            a('v_cvt_pk_bf16_f32 v%d, v%d, v%d' % (QP + 4 * h + 2 * bb + 1, r + 2, r + 3))
        a('v_permlane16_swap_b32 v%d, v%d' % (QP + 4 * h, QP + 4 * h + 2))
        a('v_permlane16_swap_b32 v%d, v%d' % (QP + 4 * h + 1, QP + 4 * h + 3))
    a('v_and_b32 v16, 3, v1')
    a('v_bfe_u32 v17, v1, 3, 1')
    a('v_lshl_add_u32 v16, v17, 2, v16')
    a('v_bfe_u32 v17, v1, 2, 1')
    a('v_lshl_add_u32 v16, v17, 3, v16')
    a('v_bfe_u32 v17, v1, 4, 1')
    a('v_cmp_eq_u32 vcc, 1, v17')
    a('v_cndmask_b32_e64 v16, v16, 16, vcc')
    a('v_lshlrev_b32 v16, 6, v16')
    a('v_lshrrev_b32 v17, 5, v1')
    a('v_lshl_add_u32 v19, v17, 5, v16')
    a('v_lshlrev_b32 v18, 4, v1')
    a('s_lshl_b32 s52, s28, 2'); a('s_add_u32 s52, s52, s29'); a('s_mul_i32 s52, s52, %d' % KVS); a('s_add_u32 s52, s52, 0x%x' % KV)
    a('s_mul_i32 s53, s29, %d' % KVS)
    stamp('A_epiq')
    a('s_cmp_eq_u32 s29, 0')
    a('s_cbranch_scc0 L_A_nopoll')
    a('s_lshl_b32 s54, s28, 8')
    a('v_mov_b32 v16, s54')
    spin_wait('v16', S_WS, 16, 'cnt16', 17)
    a.label('L_A_nopoll')
    a('s_barrier')
    stamp('A_sync16')
    a('s_add_u32 m0, s53, %d' % KVL)
    a('buffer_load_dwordx4 v18, %s, s52 offen sc1 lds' % srd(SRD_WS))
    a('s_add_u32 m0, s53, %d' % (KVL + 1024))
    a('s_add_u32 s52, s52, 1024')
    a('s_mov_b64 exec, 0xf')
    a('buffer_load_dwordx4 v18, %s, s52 offen sc1 lds' % srd(SRD_WS))
    a('s_mov_b64 exec, -1')
    a('s_lshl_b32 s52, s28, 12')
    a('v_lshlrev_b32 v16, 4, v1'); a('v_add_u32 v16, s52, v16')
    a('s_lshl_b32 s53, s27, 17'); a('s_lshl_b32 s54, s29, 15'); a('s_add_u32 s53, s53, s54'); a('s_add_u32 s53, s53, 0x%x' % CH)
    a('s_waitcnt vmcnt(0)')
    a('s_barrier')
    for h in range(4):
        a('ds_read_b128 %s, v19 offset:%d' % (vr(KZ + 8 * h, 4), KVL + h * KVS))
        a('ds_read_b128 %s, v19 offset:%d' % (vr(KZ + 8 * h + 4, 4), KVL + h * KVS + 16))
    for h in range(4):
        a('s_waitcnt lgkmcnt(%d)' % (6 - 2 * h))
        for q in range(4):
            a('v_cvt_pk_bf16_f32 v%d, v%d, v%d' % (AOP + 4 * h + q, KZ + 8 * h + 2 * q, KZ + 8 * h + 2 * q + 1))
        a('v_mfma_f32_32x32x16_bf16 %s, %s, %s, 0' % (vr(D1 + 16 * h, 16), vr(AOP + 4 * h, 4), vr(QP + 4 * h, 4)))
    a('s_mov_b32 s58, 0x%x' % fbits(1e-6))
    for h in range(4):
        d = D1 + 16 * h
        a('v_add_f32 v%d, s58, v%d' % (d + 8, d + 8))
        a('v_rcp_f32 v%d, v%d' % (d + 8, d + 8))
        for q in range(4):
            a('v_pk_mul_f32 %s, %s, %s op_sel_hi:[1,0]' % (vr(d + 2 * q, 2), vr(d + 2 * q, 2), vr(d + 8, 2)))
        for q in range(4):
            a('v_cvt_pk_bf16_f32 v%d, v%d, v%d' % (OP + 4 * h + q, d + 2 * q, d + 2 * q + 1))
        a('buffer_store_dwordx4 %s, v16, %s, s53 offen offset:%d sc1' % (vr(OP + 4 * h, 4), srd(SRD_WS), h * 1024))
    stamp('A_o')

def phase2():
    a.label('L_P2')
    make_srd(SRD_OUT, S_OUT, 2048 * 2048)
    a('s_lshl_b32 s52, s26, 4'); a('s_add_u32 s52, s52, s27'); a('s_lshl_b32 s52, s52, 2'); a('s_add_u32 s52, s52, s29')
    a('s_lshl_b32 s52, s52, 15'); a('s_add_u32 s52, s52, 0x%x' % CH)
    a('v_lshlrev_b32 v2, 4, v1')
    a('v_lshrrev_b32 v3, 5, v1')
    a('v_lshlrev_b32 v3, 10, v3')
    a('v_bfe_u32 v4, v1, 2, 2')
    a('v_lshl_add_u32 v3, v4, 7, v3')
    a('v_bfe_u32 v4, v1, 4, 1')
    a('v_lshl_add_u32 v3, v4, 5, v3')
    a('v_and_b32 v4, 3, v1')
    a('v_lshl_add_u32 v3, v4, 3, v3')
    a('v_bfe_u32 v4, v1, 3, 1')
    a('v_lshlrev_b32 v4, 6, v4')
    a('v_xor_b32 v3, v3, v4')
    a('v_add_u32 v3, %d, v3' % WO_BASE)
    a('v_xor_b32 v4, 64, v3')
    WF = [20, 28, 36]; ACC = 48
    def reads(h, F):
        return ['ds_read_b64_tr_b16 %s, v%d offset:%d' % (vr(F + 4 * tl + 2 * jj, 2), 3 + tl, h * 2048 + jj * 512)
                for tl in range(2) for jj in range(2)]
    a('s_barrier')
    stamp('P2_go')
    def load(h):
        t = ''
        if h % 4 == 0 and h: t = 's_add_u32 s52, s52, 4096\n'
        return t + 'buffer_load_dwordx4 %s, v2, %s, s52 offen offset:%d sc1' % (ar(4 * h, 4), srd(SRD_WS), (h % 4) * 1024)
    PRE = OPT['p2pre']
    for h in range(PRE): a(load(h))
    for it in reads(0, WF[0]) + reads(1, WF[1]): a(it)
    issued = PRE
    for h in range(32):
        F = WF[h % 3]
        nxt = reads(h + 2, WF[(h + 2) % 3]) if h + 2 < 32 else []
        for it in nxt: a(it)
        outstanding = (8 if h + 2 < 32 else (4 if h + 1 < 32 else 0))
        a('s_waitcnt vmcnt(%d) lgkmcnt(%d)' % (issued - 1 - h, outstanding))
        for tl in range(2):
            c = vr(ACC + 16 * tl, 16) if h else '0'
            a('v_mfma_f32_32x32x16_bf16 %s, %s, %s, %s' % (vr(ACC + 16 * tl, 16), vr(F + 4 * tl, 4), ar(4 * h, 4), c))
            if tl == 0 and issued < 32:
                a(load(issued)); issued += 1
    stamp('P2_gemm')
    PK = 84
    a('v_and_b32 v5, 31, v1')
    a('v_and_b32 v6, 7, v5')
    a('v_lshlrev_b32 v7, 7, v5')
    a('s_lshl_b32 s52, s29, 12')
    a('v_add_u32 v7, s52, v7')
    a('v_lshrrev_b32 v8, 5, v1')
    a('v_lshl_add_u32 v7, v8, 3, v7')
    for g in range(8):
        a('v_xor_b32 v9, %d, v6' % g)
        a('v_lshl_add_u32 v%d, v9, 4, v7' % (116 + g))
    for tl in range(2):
        for q in range(4):
            d = ACC + 16 * tl + 4 * q; p = PK + 2 * (tl * 4 + q)
            a('v_cvt_pk_bf16_f32 v%d, v%d, v%d' % (p, d, d + 1))
            a('v_cvt_pk_bf16_f32 v%d, v%d, v%d' % (p + 1, d + 2, d + 3))
            a('ds_write_b64 v%d, %s' % (116 + tl * 4 + q, vr(p, 2)))
    a('v_lshrrev_b32 v5, 3, v1')
    a('v_and_b32 v6, 7, v1')
    a('v_xor_b32 v8, v5, v6')
    a('v_lshlrev_b32 v8, 4, v8')
    a('v_lshl_add_u32 v8, v5, 7, v8')
    a('v_add_u32 v8, s52, v8')
    a('v_lshlrev_b32 v9, s75, v5')
    a('v_lshl_add_u32 v9, v6, 4, v9')
    a('s_lshl_b32 s53, s28, 7'); a('s_add_u32 s74, s74, s53')
    a('s_lshl_b32 s54, 8, s75')
    a('s_waitcnt lgkmcnt(0)')
    for it in range(4):
        a('ds_read_b128 %s, v8 offset:%d' % (vr(100 + 4 * it, 4), it * 1024))
    for it in range(4):
        a('s_waitcnt lgkmcnt(%d)' % (3 - it))
        a('buffer_store_dwordx4 %s, v9, %s, s74 offen' % (vr(100 + 4 * it, 4), srd(SRD_OUT)))
        if it < 3: a('s_add_u32 s74, s74, s54')
    if OPT['stamps']:
        a('s_waitcnt vmcnt(0)')
        stamp('end')
        a('s_waitcnt lgkmcnt(0)')
        a('s_lshl_b32 s52, s2, 2'); a('s_add_u32 s52, s52, s29'); a('s_lshl_b32 s52, s52, 7'); a('s_add_u32 s52, s52, 0x%x' % STAMP)
        a('v_lshlrev_b32 v2, 2, v1')
        a('v_mov_b32 v3, 0')
        for i in range(13):
            a('v_cmp_eq_u32 vcc, %d, v1' % i)
            a('v_mov_b32 v4, s%d' % (76 + 2 * i))
            a('v_cndmask_b32 v3, v3, v4, vcc')
        a('s_mov_b64 exec, 0x1fff')
        a('buffer_store_dword v3, v2, %s, s52 offen' % srd(SRD_WS))
    a('s_endpgm')

hdr = open('concat_heads__linear_attn_block__sliding_local_dilated__prompt.s.ref').read().split('\n')
for l in hdr:
    if l.startswith('; @launch'): break
    a(l)
if OPT['empty2']:
    a('; @launch kernel=%s grid=(256,1,1) block=(256,1,1) lds=%d' % (KNAME, LDS_BYTES))
    for i in range(OPT['empty2']):
        a('; @launch kernel=empty_kernel grid=(256,1,1) block=(256,1,1) lds=0')
else:
    a('; @launch grid=(256,1,1) block=(256,1,1) lds=%d' % LDS_BYTES)
a('.amdgcn_target "amdgcn-amd-amdhsa--gfx950"')
if OPT['pf']: OPT['pf'] = 6
kernel_begin(a, KNAME)
body_start = len(a.lines)
prologue()
base = NSTAMP[0]
a_path()
NSTAMP[0] = base
b_path()
NSTAMP[0] = 10
phase2()
a.label('L_kend')
body = fix_hazards(a.lines[body_start:], verbose=True)
a.lines = a.lines[:body_start] + body
if OPT['empty2']:
    kernel_begin(a, 'empty_kernel')
    a('s_endpgm')
kernel_desc(a, KNAME, 384, 102, 256)
if OPT['empty2']:
    kernel_desc(a, 'empty_kernel', 64, 32)
open(OPT['out'], 'w').write(a.text())
print('lines', len(a.lines))
```

```python
import sys, struct
from asmlib import *

KNAME = 'concat_heads__linear_attn_block__sliding_local_dilated__prompt_kernel'
OPT = dict(stamps=0, rot=0, ststamps=0, dpf=0, prostamps=0, out='k.s', spin=1 << 20, span=0, empty2=0, pf=1, p2pre=8,
           b_nodma=0, b_noread=0, b_nomfma=0)
for arg in sys.argv[1:]:
    k, v = arg.split('=')
    OPT[k] = int(v, 0) if k not in ('out',) else v

def fbits(x): return struct.unpack('<I', struct.pack('<f', x))[0]
LOG2E = 1.4426950408889634
NEG = -1.0e30

CNT16 = 0x0000; CNT8 = 0x1000; KV = 0x4000; KVS = 1280; CH = 0x100000; STAMP = 0x600000
WS_SIZE = 0x800000
NZERO_WG = 16
WO_BASE = 98304
B_SLOT = 43008
A_SLOT = 16384
A_SCR = 81920
A_ZSCR = 32768
LDS_BYTES = 163840

S_AX, S_AW, S_AO, S_BX, S_BW, S_BO, S_OUT, S_DBG, S_WS = 8, 10, 12, 14, 16, 18, 20, 22, 24
sBR, sRB, sHG, sWV = 26, 27, 28, 29
SRD_X, SRD_W, SRD_O, SRD_WS, SRD_OUT = 32, 36, 40, 44, 48
def srd(r): return 's[%d:%d]' % (r, r + 3)
def vr(r, n=1): return 'v%d' % r if n == 1 else 'v[%d:%d]' % (r, r + n - 1)
def ar(r, n=1): return 'a%d' % r if n == 1 else 'a[%d:%d]' % (r, r + n - 1)

a = Asm()
NSTAMP = [0]
def stamp(name, pro=False):
    if not OPT['stamps']: return
    if OPT['ststamps']:
        if not (name in ('start', 'A_first', 'B_first', 'end') or name.startswith('st')): return
        if name == 'end': NSTAMP[0] = 12
    elif name.startswith('st') and name != 'start': return
    if OPT['prostamps']:
        if not (pro or name in ('start', 'A_issued', 'B_issued', 'A_first', 'B_first', 'end', 'A_pass1', 'B_gemm')): return
        if name == 'end': NSTAMP[0] = 12
    elif pro: return
    i = NSTAMP[0]; NSTAMP[0] += 1
    assert i < 13
    a('s_memtime s[%d:%d]   ; stamp %s' % (76 + 2 * i, 77 + 2 * i, name))

class VM:
    def __init__(self): self.q = []
    def issue(self, tag, n=1): self.q += [tag] * n
    def count_after(self, tag):
        if tag not in self.q: return None
        idx = max(i for i, t in enumerate(self.q) if t == tag)
        return len(self.q) - 1 - idx
    def wait(self, tag):
        n = self.count_after(tag)
        if n is None: return
        assert n <= 63
        a('s_waitcnt vmcnt(%d)   ; %s' % (n, tag))
        self.q = self.q[len(self.q) - n:] if n else []
    def wait_all_of(self, tags):
        ns = [(self.count_after(t), t) for t in tags if self.count_after(t) is not None]
        if ns: self.wait(min(ns)[1])
    def all(self):
        a('s_waitcnt vmcnt(0)'); self.q = []

def make_srd(r, sp, size):
    a('s_mov_b32 s%d, s%d' % (r, sp)); a('s_mov_b32 s%d, s%d' % (r + 1, sp + 1))
    a('s_mov_b32 s%d, 0x%x' % (r + 2, size)); a('s_mov_b32 s%d, 0x20000' % (r + 3))

def weave(main, streams):
    slots = [[] for _ in main]; tail = []
    for items, first, step in streams:
        for k, it in enumerate(items):
            pos = int(first + k * step)
            (slots[pos] if pos < len(main) else tail).append(it)
    def em(it):
        if isinstance(it, tuple):
            a(it[0]); it[1]()
        else: a(it)
    for m, sl in zip(main, slots):
        em(m)
        for it in sl: em(it)
    for it in tail: em(it)

def spin_wait(vaddr, base, cmp_lit, name, vd):
    L = 'L_spin_' + name; D = 'L_spun_' + name
    a('s_mov_b32 s56, 0')
    a.label(L)
    a('global_load_dword v%d, %s, s[%d:%d] sc1' % (vd, vaddr, base, base + 1))
    a('s_waitcnt vmcnt(0)')
    a('v_readfirstlane_b32 s57, v%d' % vd)
    a('s_add_u32 s56, s56, 1')
    a('s_cmp_ge_u32 s56, 0x%x' % OPT['spin'])
    a('s_cbranch_scc1 %s' % D)
    a('s_cmp_lt_u32 s57, %d' % cmp_lit)
    a('s_cbranch_scc1 %s' % L)
    a.label(D)

def init_load(vz, vd):
    return 'v_mov_b32 v%d, 0\nglobal_load_dword v%d, v%d, s[%d:%d] sc1' % (vz, vd, vz, S_DBG, S_DBG + 1)
def init_check(name, vz, vd):
    a('v_readfirstlane_b32 s57, v%d' % vd)
    a('s_cmp_ge_u32 s57, %d' % NZERO_WG)
    a('s_cbranch_scc1 L_initok_%s' % name)
    spin_wait('v%d' % vz, S_DBG, NZERO_WG, 'init_' + name, vd)
    a.label('L_initok_%s' % name)

def prologue():
    a('s_cmp_ge_u32 s2, 256')
    a('s_cbranch_scc0 L_go')
    a('s_endpgm')
    a.label('L_go')
    a('s_load_dwordx16 s[8:23], s[0:1], 0')
    a('s_load_dwordx2 s[24:25], s[0:1], 64')
    stamp('start')
    if OPT['span']:
        a('s_memrealtime s[96:97]')
        a('s_memtime s[98:99]')
    a('v_and_b32 v1, 63, v0')
    a('v_lshrrev_b32 v2, 6, v0')
    a('s_lshr_b32 s26, s2, 2')
    a('v_readfirstlane_b32 s29, v2')
    a('s_and_b32 s26, s26, 1')
    a('s_and_b32 s52, s2, 3')
    a('s_lshr_b32 s53, s2, 3')
    a('s_lshr_b32 s27, s53, 3')
    a('s_lshl_b32 s52, s52, 2')
    a('s_add_u32 s27, s27, s52')
    a('s_and_b32 s28, s53, 7')
    if OPT['pf']:
        a('s_lshl_b32 s56, s53, 2'); a('s_add_u32 s56, s56, s29')
        a('s_cmp_ge_u32 s56, (L_kend-L_pf_pc)>>10')
        a('s_cbranch_scc1 L_nopf')
        a('s_getpc_b64 s[54:55]')
        a.label('L_pf_pc')
        a('s_lshl_b32 s56, s56, 10')
        a('v_lshlrev_b32 v3, 4, v1')
        a('v_add_u32 v3, s56, v3')
        a('global_load_dwordx4 v[240:243], v3, s[54:55]')
        a.label('L_nopf')
    a('v_lshrrev_b32 v16, 3, v1')
    a('s_lshl_b32 s52, s29, 4')
    a('v_add_u32 v17, s52, v16')
    a('v_mul_u32_u24 v17, 3072, v17')
    a('v_lshrrev_b32 v18, 4, v1')
    a('v_and_b32 v19, 1, v18')
    a('v_lshlrev_b32 v19, 1, v19')
    a('v_and_b32 v20, 7, v1')
    a('v_xor_b32 v19, v19, v20')
    a('v_lshlrev_b32 v19, 4, v19')
    a('s_lshl_b32 s52, s28, 7')
    a('v_add3_u32 v7, v17, v19, s52')
    a('v_xor_b32 v8, 64, v7')
    a('v_add_u32 v8, %d, v8' % (8 * 3072))
    stamp('prekarg', True)
    a('s_waitcnt lgkmcnt(0)')
    stamp('karg', True)
    make_srd(SRD_WS, S_WS, WS_SIZE)
    a('s_cmp_ge_u32 s2, %d' % NZERO_WG)
    a('s_cbranch_scc1 L_nozero')
    a('v_mov_b32 v24, 0'); a('v_mov_b32 v25, 0'); a('v_mov_b32 v26, 0'); a('v_mov_b32 v27, 0')
    a('v_lshlrev_b32 v22, 4, v1')
    a('s_lshl_b32 s52, s2, 12')
    a('s_lshl_b32 s53, s29, 10')
    a('s_add_u32 s52, s52, s53')
    a('buffer_store_dwordx4 v[24:27], v22, %s, s52 offen sc1' % srd(SRD_WS))
    a.label('L_nozero')
    a('s_cmp_eq_u32 s26, 0')
    a('s_cbranch_scc0 L_B')

def wfrag_base_items():
    return ['v_lshlrev_b32 v9, 10, v18', 'v_bfe_u32 v21, v1, 2, 2', 'v_lshl_add_u32 v9, v21, 7, v9',
            'v_and_b32 v21, 3, v1', 'v_lshl_add_u32 v9, v21, 3, v9', 'v_bfe_u32 v21, v1, 3, 2', 'v_lshl_add_u32 v9, v21, 5, v9']

def data_prefetch(vm=None):
    m = OPT['dpf']
    if not m: return 0
    n = 0
    a('s_lshr_b32 s57, s2, 3'); a('s_lshl_b32 s57, s57, 2'); a('s_add_u32 s57, s57, s29')
    a('v_lshlrev_b32 v246, 7, v1')
    if m & 1:
        skip = 4096 if (m & 8) else 0
        a('s_lshl_b32 s58, s57, 13'); a('s_add_u32 s58, s58, %d' % (skip * 128))
        a('buffer_load_dword v247, v246, %s, s58 offen' % srd(SRD_W)); n += 1
        if not (m & 8):
            a('s_lshl_b32 s58, s57, 12'); a('s_add_u32 s58, s58, %d' % (8192 * 128))
            a('s_mov_b64 exec, 0xffffffff')
            a('buffer_load_dword v247, v246, %s, s58 offen' % srd(SRD_W)); n += 1
            a('s_mov_b64 exec, -1')
    if m & 2:
        a('s_and_b32 s58, s2, 3'); a('s_lshl_b32 s58, s58, 19'); a('s_lshl_b32 s56, s57, 12'); a('s_add_u32 s58, s58, s56')
        a('s_mov_b64 exec, 0xffffffff')
        a('buffer_load_dword v247, v246, %s, s58 offen' % srd(SRD_X)); n += 1
        a('s_mov_b64 exec, -1')
    if m & 4:
        a('s_lshl_b32 s58, s57, 12')
        a('s_mov_b64 exec, 0xffffffff')
        a('buffer_load_dword v247, v246, %s, s58 offen' % srd(SRD_O)); n += 1
        a('s_mov_b64 exec, -1')
    if vm: vm.issue('pf', n)
    return n

def rot_off(dst):
    m = OPT['rot']
    if m == 1:
        a('s_and_b32 %s, s2, 3' % dst); a('s_lshl_b32 %s, %s, 1' % (dst, dst))
    elif m == 2:
        a('s_xor_b32 %s, s27, s28' % dst); a('s_and_b32 %s, %s, 1' % (dst, dst)); a('s_lshl_b32 %s, %s, 2' % (dst, dst))
    elif m == 3:
        a('s_and_b32 %s, s2, 3' % dst)
    elif m == 4:
        a('s_and_b32 %s, s2, 1' % dst); a('s_lshl_b32 %s, %s, 2' % (dst, dst))

def zero_signal(vm_after):
    L = a.newlabel('L_nosig')
    a('s_cmp_ge_u32 s2, %d' % NZERO_WG)
    a('s_cbranch_scc1 %s' % L)
    a('s_waitcnt vmcnt(%d)' % vm_after)
    a('s_barrier')
    a('s_cmp_eq_u32 s29, 0')
    a('s_cbranch_scc0 %s' % L)
    a('v_mov_b32 v244, 0'); a('v_mov_b32 v245, 1')
    a('s_mov_b64 exec, 1')
    a('global_atomic_add v244, v245, s[%d:%d] sc1' % (S_DBG, S_DBG + 1))
    a('s_mov_b64 exec, -1')
    a.label(L)

def wo_dma_list(lo, hi, voff, stmp):
    L = []
    for ii in range(lo, hi):
        L.append('s_add_u32 m0, s70, 0x%x\ns_mov_b32 s%d, 0x%x\nbuffer_load_dwordx4 v%d, %s, s%d offen lds' %
                 (ii * 1024, stmp, ii * 8192, voff, srd(SRD_O), stmp))
    return L

def wo_voff_items(vdst, vt, st=52):
    return ['v_lshrrev_b32 v%d, 3, v1' % vt,
            's_lshl_b32 s%d, s29, 7' % st,
            'v_add_u32 v%d, s%d, v%d' % (vt, st, vt),
            'v_lshlrev_b32 v%d, 10, v%d' % (vt, vt),
            'v_bfe_u32 v%d, v1, 4, 1' % (vt + 1),
            'v_lshlrev_b32 v%d, 2, v%d' % (vt + 1, vt + 1),
            'v_and_b32 v%d, 7, v1' % (vt + 2),
            'v_xor_b32 v%d, v%d, v%d' % (vt + 1, vt + 1, vt + 2),
            'v_lshlrev_b32 v%d, 4, v%d' % (vt + 1, vt + 1),
            's_lshl_b32 s%d, s28, 7' % st,
            'v_add3_u32 v%d, v%d, v%d, s%d' % (vdst, vt, vt + 1, st),
            's_lshl_b32 s70, s29, 14',
            's_add_u32 s70, s70, 0x%x' % WO_BASE]

def publish_signal(br):
    a('s_waitcnt vmcnt(0)')
    a('s_barrier')
    stamp('published')
    a('s_lshl_b32 s59, s27, 8')
    a('s_add_u32 s59, s59, 0x%x' % (CNT8 + br * 16 * 256))
    a('s_cmp_eq_u32 s29, 0')
    a('s_cbranch_scc0 L_pub_%d' % br)
    a('v_mov_b32 v16, s59'); a('v_mov_b32 v18, 1')
    a('s_mov_b64 exec, 1')
    a('global_atomic_add v16, v18, s[%d:%d] sc1' % (S_WS, S_WS + 1))
    a('s_mov_b64 exec, -1')
    spin_wait('v16', S_WS, 8, 'cnt8_%d' % br, 17)
    a.label('L_pub_%d' % br)

B_F = [dict(x=20, w=56), dict(x=68, w=104)]
B_Q, B_K, B_V = 116, 148, 184
B_CPREV, B_CCUR, B_CH0, B_CH1, B_ONES = 220, 224, 228, 232, 236

def b_dma_w(base, lit=0):
    L = []
    for seg in (1, 2, 0):
        for ii in range(2):
            L.append('s_add_u32 m0, %s, 0x%x\nbuffer_load_dwordx4 v%d, %s, s%d offen lds' %
                     (base, lit + seg * 8192 + ii * 1024, 7 + ii, srd(SRD_W), 61 + seg))
    if OPT['rot']:
        L[-1] += '\ns_add_u32 s61, s61, 0x30000\ns_cmp_eq_u32 s61, 0x180000\ns_cselect_b32 s61, 0, s61\ns_add_u32 s62, s61, 1024\ns_add_u32 s63, s61, 2048'
    else:
        L[-1] += '\ns_add_u32 s61, s61, 0x30000\ns_add_u32 s62, s62, 0x30000\ns_add_u32 s63, s63, 0x30000'
    return L
def b_dma_x(bx, bh, lit=0):
    L = []
    for ii in range(4):
        L.append('s_add_u32 m0, %s, 0x%x\nbuffer_load_dwordx4 v%d, %s, s60 offen lds' % (bx, lit + ii * 1024, 2 + ii, srd(SRD_X)))
    L.append('s_add_u32 m0, %s, 0x%x\ns_mov_b64 exec, 0xffffffff\nbuffer_load_dwordx4 v6, %s, s60 offen lds\ns_mov_b64 exec, -1\ns_add_u32 s60, s60, 128' %
             (bh, lit, srd(SRD_X)) + ('\ns_and_b32 s60, s60, 1023' if OPT['rot'] else ''))
    return L

def b_reads(F, vx, vw, kk):
    L = []
    if OPT['b_noread']: return L
    for seg in range(3):
        for jj in range(2):
            L.append('ds_read_b64_tr_b16 %s, v%d offset:%d' % (vr(F['w'] + seg * 4 + jj * 2, 2), vw, seg * 8192 + kk * 4096 + jj * 512))
    for t in range(9):
        L.append('ds_read_b128 %s, v%d offset:%d' % (vr(F['x'] + 4 * t, 4), vx, t * 2048))
    return L

def b_mfmas(F):
    L = []
    if OPT['b_nomfma']: return ['s_nop 0'] * 26
    for t in range(9):
        x = vr(F['x'] + 4 * t, 4)
        if t < 8:
            L.append('v_mfma_f32_16x16x32_bf16 %s, %s, %s, %s' % (vr(B_Q + 4 * t, 4), vr(F['w'], 4), x, vr(B_Q + 4 * t, 4)))
        L.append('v_mfma_f32_16x16x32_bf16 %s, %s, %s, %s' % (vr(B_K + 4 * t, 4), vr(F['w'] + 4, 4), x, vr(B_K + 4 * t, 4)))
        L.append('v_mfma_f32_16x16x32_bf16 %s, %s, %s, %s' % (vr(B_V + 4 * t, 4), x, vr(F['w'] + 8, 4), vr(B_V + 4 * t, 4)))
    return L

def b_stage(dma_x, dma_w, vmn, last=False, loop=None):
    nd = OPT['b_nodma']
    misc0 = []
    if not last:
        misc0 += ['v_add_u32 v15, s65, v10', 'v_add_u32 v16, s65, v12']
    if dma_w: misc0 += ['s_add_u32 s69, s64, s73']
    dx = b_dma_x('s67', 's68') if (dma_x and not nd) else []
    pre = ['s_add_u32 s67, s66, s71\ns_add_u32 s68, s66, s72'] if dma_x else []
    weave(b_mfmas(B_F[0]), [(pre, 0, 1), (b_reads(B_F[1], 13, 14, 1), 0, 1), (dx, 3, 5), (misc0, 16, 2)])
    a('s_waitcnt lgkmcnt(0)')
    if vmn is not None: a('s_waitcnt vmcnt(%d)' % vmn)
    a('s_barrier')
    stamp('stB')
    rd = b_reads(B_F[0], 15, 16, 0) if not last else []
    dw = b_dma_w('s69') if (dma_w and not nd) else []
    misc1 = []
    if not last:
        misc1 = ['v_add_u32 v13, s65, v11', 'v_mov_b32 v14, v16',
                 's_mov_b32 s53, s64\ns_mov_b32 s64, s65', 's_mov_b32 s65, s66\ns_mov_b32 s66, s53']
    if loop: misc1 += ['s_add_u32 s74, s74, 1\ns_cmp_lt_u32 s74, %d' % loop]
    weave(b_mfmas(B_F[1]), [(rd, 0, 1), (dw, 2, 4), (misc1, 15 if not dw else 23, 2 if not dw else 0)])
    if not last: a('s_waitcnt lgkmcnt(0)')

def b_path():
    a.label('L_B')
    make_srd(SRD_X, S_BX, 2048 * 1024)
    make_srd(SRD_W, S_BW, 512 * 3072)
    a('s_lshl_b32 s71, s29, 12')
    a('s_lshl_b32 s72, s29, 9'); a('s_add_u32 s72, s72, 16384')
    a('s_lshl_b32 s73, s29, 11'); a('s_add_u32 s73, s73, 18432')
    if OPT['rot']:
        rot_off('s57')
        a('s_lshl_b32 s60, s57, 7'); a('s_mul_i32 s61, s57, 0x30000'); a('s_add_u32 s62, s61, 1024'); a('s_add_u32 s63, s61, 2048')
    else:
        a('s_mov_b32 s60, 0'); a('s_mov_b32 s61, 0'); a('s_mov_b32 s62, 1024'); a('s_mov_b32 s63, 2048')
    stamp('B_predma', True)
    for it in b_dma_w('s73', 0): a(it)
    a('s_lshl_b32 s52, s27, 7')
    a('s_and_b32 s53, s29, 1')
    a('s_lshr_b32 s54, s29, 1')
    a('s_lshl_b32 s55, s53, 6')
    a('s_add_u32 s55, s55, s54')
    a('s_add_u32 s55, s55, s52')
    a('s_lshl_b32 s55, s55, 10')
    a('v_lshlrev_b32 v17, 11, v16')
    a('v_xor_b32 v19, v20, v18')
    a('v_lshlrev_b32 v19, 4, v19')
    a('v_add3_u32 v2, v17, v19, s55')
    a('v_xor_b32 v3, 64, v2')
    a('v_add_u32 v4, 32768, v2')
    a('v_add_u32 v5, 49152, v3')
    a('v_add_u32 v3, 16384, v3')
    a('s_lshl_b32 s55, s53, 3')
    a('s_add_u32 s55, s55, s54')
    a('s_add_u32 s55, s55, s52')
    a('s_sub_u32 s55, s55, 16')
    a('s_lshl_b32 s55, s55, 10')
    a('s_lshl_b32 s56, s29, 1')
    a('v_add_u32 v19, s56, v18')
    a('v_and_b32 v19, 7, v19')
    a('v_xor_b32 v19, v19, v20')
    a('v_lshlrev_b32 v19, 4, v19')
    a('v_add3_u32 v6, v17, v19, s55')
    for it in b_dma_x('s71', 's72', 0): a(it)
    stamp('B_dma0', True)
    make_srd(SRD_O, S_BO, 512 * 1024)
    npf = data_prefetch()
    dm = b_dma_w('s73', B_SLOT) + b_dma_x('s71', 's72', B_SLOT) + b_dma_w('s73', 2 * B_SLOT)
    setup = []
    setup += wfrag_base_items()
    setup += ['v_and_b32 v21, 15, v1', 'v_lshlrev_b32 v10, 7, v21', 'v_bfe_u32 v22, v1, 1, 3', 'v_xor_b32 v22, v22, v18',
              'v_lshl_add_u32 v10, v22, 4, v10', 'v_xor_b32 v11, 64, v10',
              's_lshl_b32 s57, s29, 5', 'v_xor_b32 v12, s57, v9', 'v_add_u32 v12, 18432, v12']
    setup += ['v_mov_b32 v%d, 0' % r for r in range(B_Q, B_V + 36)]
    setup += ['s_mov_b32 s58, 0x%x' % fbits(NEG), 's_cmp_eq_u32 s27, 0\ns_cselect_b32 s57, s58, 0', 'v_mov_b32 v22, s58', 'v_lshlrev_b32 v23, 2, v18']
    for r in range(4):
        setup += ['v_add_u32 v24, %d, v23' % r, 'v_sub_u32 v25, v24, v21', 'v_sub_u32 v26, v21, v24',
                  'v_cmp_le_i32 vcc, 9, v25\nv_cndmask_b32_e64 v%d, v22, 0, vcc' % (B_CPREV + r),
                  'v_cmp_ge_u32 vcc, 7, v26\nv_cndmask_b32_e64 v%d, v22, 0, vcc' % (B_CCUR + r),
                  'v_cmp_le_i32 vcc, 1, v25\nv_cmp_ge_u32 s[54:55], 7, v24\ns_and_b64 vcc, vcc, s[54:55]\nv_cndmask_b32_e64 v%d, v22, 0, vcc' % (B_CH0 + r),
                  'v_min_f32 v%d, s57, v%d' % (B_CH0 + r, B_CH0 + r),
                  'v_min_f32 v%d, s57, v%d' % (B_CH1 + r, B_CPREV + r),
                  'v_mov_b32 v%d, 0x3f803f80' % (B_ONES + r)]
    setup += wo_voff_items(17, 24)
    step = len(setup) / float(len(dm) + 1)
    weave(setup, [(dm, 2, step)])
    stamp('B_issued')
    zero_signal(28 + npf)
    a('s_mov_b32 s64, 0'); a('s_mov_b32 s65, %d' % B_SLOT); a('s_mov_b32 s66, %d' % (2 * B_SLOT))
    a('v_mov_b32 v13, v11'); a('v_mov_b32 v14, v12')
    a('s_mov_b32 s74, 0')
    a('s_waitcnt vmcnt(%d)' % (17 + npf))
    a('s_barrier')
    stamp('B_first')
    for it in b_reads(B_F[0], 10, 12, 0): a(it)
    a('s_waitcnt lgkmcnt(0)')
    if OPT['ststamps']:
        for i in range(5): b_stage(True, True, 11)
    else:
        a.label('L_Bloop')
        b_stage(True, True, 11, loop=5)
        a('s_cbranch_scc1 L_Bloop')
    b_stage(True, False, 11)
    b_stage(False, False, 0)
    b_stage(False, False, None, last=True)
    stamp('B_gemm')
    b_attention()
    a('s_lshl_b32 s52, s27, 7')
    a('s_and_b32 s53, s29, 1'); a('s_lshl_b32 s53, s53, 6')
    a('s_lshr_b32 s54, s29, 1')
    a('s_add_u32 s52, s52, s53'); a('s_add_u32 s52, s52, s54')
    a('s_lshl_b32 s74, s52, 11'); a('s_add_u32 s74, s74, 1024')
    a('s_mov_b32 s75, 12')
    publish_signal(1)

def b_attention():
    QP, KP, LV = 20, 36, (54, 64)
    S = 116; MX = 180; T = 188; P = 74; OP = 20
    wo = wo_dma_list(0, 16, 17, 59)
    L = []
    for t in range(8):
        L.append('v_cvt_pk_bf16_f32 v%d, v%d, v%d' % (QP + 2 * t, B_Q + 4 * t, B_Q + 4 * t + 1))
        L.append('v_cvt_pk_bf16_f32 v%d, v%d, v%d' % (QP + 2 * t + 1, B_Q + 4 * t + 2, B_Q + 4 * t + 3))
    for t in range(9):
        L.append('v_cvt_pk_bf16_f32 v%d, v%d, v%d' % (KP + 2 * t, B_K + 4 * t, B_K + 4 * t + 1))
        L.append('v_cvt_pk_bf16_f32 v%d, v%d, v%d' % (KP + 2 * t + 1, B_K + 4 * t + 2, B_K + 4 * t + 3))
    for p in range(2):
        for k, t in enumerate([8] + [4 * p + b for b in range(4)]):
            L.append('v_cvt_pk_bf16_f32 v%d, v%d, v%d' % (LV[p] + 2 * k, B_V + 4 * t, B_V + 4 * t + 1))
            L.append('v_cvt_pk_bf16_f32 v%d, v%d, v%d' % (LV[p] + 2 * k + 1, B_V + 4 * t + 2, B_V + 4 * t + 3))
    weave(L, [([init_load(244, 245)], 0, 1), (wo[:6], 4, 8)])
    for t in range(8):
        b = t & 3; p = t >> 2
        prev = t - 1 if b > 0 else 8
        cm = B_CPREV if b > 0 else (B_CH0 if p == 0 else B_CH1)
        a('v_mfma_f32_16x16x16_bf16 %s, %s, %s, %s' % (vr(S + 8 * t, 4), vr(KP + 2 * prev, 2), vr(QP + 2 * t, 2), vr(cm, 4)))
        a('v_mfma_f32_16x16x16_bf16 %s, %s, %s, %s' % (vr(S + 8 * t + 4, 4), vr(KP + 2 * t, 2), vr(QP + 2 * t, 2), vr(B_CCUR, 4)))
    L = []
    for t in range(8):
        s = S + 8 * t
        L.append('v_max3_f32 v%d, v%d, v%d, v%d' % (MX + t, s, s + 1, s + 2))
        L.append('v_max3_f32 v%d, v%d, v%d, v%d' % (T + t, s + 3, s + 4, s + 5))
    for t in range(8):
        s = S + 8 * t
        L.append('v_max3_f32 v%d, v%d, v%d, v%d' % (MX + t, MX + t, s + 6, s + 7))
    for t in range(8):
        L.append('v_max_f32 v%d, v%d, v%d' % (MX + t, MX + t, T + t))
    weave(L, [(wo[6:9], 4, 8)])
    a('s_mov_b32 s52, 0x%x' % fbits(0.25 * LOG2E))
    a('s_mov_b32 s53, s52')
    def batch(m):
        A_, B_, C_, D_ = m, m + 1, m + 2, m + 3
        return ['v_permlane16_swap_b32 v%d, v%d' % (A_, B_),
                'v_permlane16_swap_b32 v%d, v%d' % (C_, D_),
                'v_max_f32 v%d, v%d, v%d' % (A_, A_, B_),
                'v_max_f32 v%d, v%d, v%d' % (C_, C_, D_),
                'v_permlane32_swap_b32 v%d, v%d' % (A_, C_),
                'v_max_f32 v%d, v%d, v%d' % (A_, A_, C_),
                'v_mul_f32 v%d, s52, v%d' % (A_, A_),
                'v_mov_b32 v%d, v%d' % (C_, A_),
                'v_permlane32_swap_b32 v%d, v%d' % (A_, C_),
                'v_mov_b32 v%d, v%d' % (B_, A_),
                'v_mov_b32 v%d, v%d' % (D_, C_),
                'v_permlane16_swap_b32 v%d, v%d' % (A_, B_),
                'v_permlane16_swap_b32 v%d, v%d' % (C_, D_)]
    b0 = batch(MX); b1 = batch(MX + 4)
    for x, y in zip(b0, b1):
        a(x); a(y)
    L = []
    for t in range(8):
        s = S + 8 * t
        mreg = MX + (t & ~1); sel = t & 1
        for q in range(4):
            L.append('v_pk_fma_f32 %s, %s, s[52:53], %s op_sel:[0,0,%d] op_sel_hi:[1,1,%d] neg_lo:[0,0,1] neg_hi:[0,0,1]' %
                     (vr(s + 2 * q, 2), vr(s + 2 * q, 2), vr(mreg, 2), sel, sel))
        for q in range(8):
            L.append('v_exp_f32 v%d, v%d' % (s + q, s + q))
        for q in range(4):
            L.append('v_cvt_pk_bf16_f32 v%d, v%d, v%d' % (P + 4 * t + q, s + 2 * q, s + 2 * q + 1))
    weave(L, [(wo[9:16], 4, 16)])
    for t in range(8):
        b = t & 3; p = t >> 2
        a('v_mfma_f32_16x16x32_bf16 %s, %s, %s, 0' % (vr(S + 8 * t, 4), vr(LV[p] + 2 * b, 4), vr(P + 4 * t, 4)))
        a('v_mfma_f32_16x16x32_bf16 %s, %s, %s, 0' % (vr(S + 8 * t + 4, 4), vr(B_ONES, 4), vr(P + 4 * t, 4)))
    a('s_lshl_b32 s52, s28, 2'); a('s_add_u32 s52, s52, s29'); a('s_lshl_b32 s52, s52, 10')
    a('v_lshlrev_b32 v16, 4, v1'); a('v_add_u32 v16, s52, v16')
    a('s_add_u32 s53, s27, 16'); a('s_lshl_b32 s53, s53, 17'); a('s_add_u32 s53, s53, 0x%x' % CH)
    for pr in range(4):
        for u in range(2):
            t = 2 * pr + u; s = S + 8 * t
            a('v_rcp_f32 v%d, v%d' % (s + 4, s + 4))
        for u in range(2):
            t = 2 * pr + u; s = S + 8 * t
            a('v_pk_mul_f32 %s, %s, %s op_sel_hi:[1,0]' % (vr(s, 2), vr(s, 2), vr(s + 4, 2)))
            a('v_pk_mul_f32 %s, %s, %s op_sel_hi:[1,0]' % (vr(s + 2, 2), vr(s + 2, 2), vr(s + 4, 2)))
            a('v_cvt_pk_bf16_f32 v%d, v%d, v%d' % (OP + 4 * pr + 2 * u, s, s + 1))
            a('v_cvt_pk_bf16_f32 v%d, v%d, v%d' % (OP + 4 * pr + 2 * u + 1, s + 2, s + 3))
        a('v_permlane16_swap_b32 v%d, v%d' % (OP + 4 * pr, OP + 4 * pr + 2))
        a('v_permlane16_swap_b32 v%d, v%d' % (OP + 4 * pr + 1, OP + 4 * pr + 3))
        a('s_add_u32 s54, s53, 0x%x' % (pr * 32768))
        a('buffer_store_dwordx4 %s, v16, %s, s54 offen sc1' % (vr(OP + 4 * pr, 4), srd(SRD_WS)))
    stamp('B_att')
    a('s_waitcnt vmcnt(20)')
    init_check('B', 244, 245)

A_F = [20, 52]
A_ROT = 84
A_K, A_V, A_Q = 84, 116, 148
def a_xreg(ks, bb): return (ks * 2 + bb) * 4

def a_units(st):
    if st < 8: return [(1, st), (2, st)]
    q = st - 8
    return [(0, 2 * q), (0, 2 * q + 1)]

def a_dma_w(st, vm):
    L = []
    slot = (st % 5) * A_SLOT
    for u, (seg, c) in enumerate(a_units(st)):
        for ii in range(2):
            if OPT['rot']:
                so = 's_add_u32 s%d, s%d, %d' % (52 + ii, A_ROT + c, seg * 1024)
            else:
                so = 's_mov_b32 s%d, 0x%x' % (52 + ii, c * 196608 + seg * 1024)
            L.append(('s_add_u32 m0, s71, 0x%x\n%s\nbuffer_load_dwordx4 v%d, %s, s%d offen lds' %
                      (slot + u * 8192 + ii * 1024, so, 7 + ii, srd(SRD_W), 52 + ii),
                      lambda t='W%d' % st: vm.issue(t)))
    return L

def a_dma_x(c, vm):
    L = []
    for i in range(4):
        if OPT['rot']:
            so = 's_add_u32 s%d, s%d, %d' % (60 + (i & 1), A_ROT + 8 + c, (i >> 1) * 16384)
        else:
            so = 's_mov_b32 s%d, 0x%x' % (60 + (i & 1), (i >> 1) * 16384 + c * 128)
        L.append(('s_add_u32 m0, s70, 0x%x\n%s\nbuffer_load_dwordx4 v%d, %s, s%d offen lds' %
                  ((c % 4) * 4096 + i * 1024, so, 2 + (i & 1), srd(SRD_X), 60 + (i & 1)),
                  lambda t='x%d' % c: vm.issue(t)))
    return L

def a_xreads(c):
    L = []
    for kk in range(2):
        for bb in range(2):
            L.append('ds_read_b128 %s, v%d offset:%d' % (ar(a_xreg(2 * c + kk, bb), 4), 4 + kk, (c % 4) * 4096 + bb * 2048))
    return L

def a_reads(F, st, step):
    L = []
    slot = (st % 5) * A_SLOT
    for f in range(8):
        hh = f & 3; hi = f >> 2
        if st < 8: u, kk = hi, step
        else: u, kk = step, hi
        for jj in range(2):
            off = slot + u * 8192 + kk * 4096 + jj * 512
            if slot >= 4 * A_SLOT: v = 14 + hh; imm = off - 65536
            else: v = 10 + hh; imm = off
            assert 0 <= imm < 65536
            L.append('ds_read_b64_tr_b16 %s, v%d offset:%d' % (vr(F + 4 * f + 2 * jj, 2), v, imm))
    return L

def a_mfmas(F, st, step):
    L = []
    for f in range(8):
        hh = f & 3; hi = f >> 2
        for bb in range(2):
            w = vr(F + 4 * f, 4)
            if st < 8:
                ks = 2 * st + step
                x = ar(a_xreg(ks, bb), 4)
                acc = (A_K if hi == 0 else A_V) + (bb * 4 + hh) * 4
                L.append('v_mfma_f32_16x16x32_bf16 %s, %s, %s, %s' % (vr(acc, 4), x, w, vr(acc, 4)))
            else:
                c = 2 * (st - 8) + step
                ks = 2 * c + hi
                x = ar(a_xreg(ks, bb), 4)
                acc = A_Q + (bb * 4 + hh) * 4
                L.append('v_mfma_f32_16x16x32_bf16 %s, %s, %s, %s' % (vr(acc, 4), w, x, vr(acc, 4)))
    return L

def phi4(r, cm, tmp):
    L = []
    for q in range(2):
        L.append('v_pk_fma_f32 %s, %s, s[54:55], %s' % (vr(tmp + 2 * q, 2), vr(r + 2 * q, 2), vr(cm, 2)))
    for q in range(4):
        L.append('v_exp_f32_e64 v%d, v%d clamp' % (tmp + q, tmp + q))
    for q in range(4):
        L.append('v_max_f32 v%d, s58, v%d' % (r + q, r + q))
    for q in range(2):
        L.append('v_pk_add_f32 %s, %s, %s' % (vr(r + 2 * q, 2), vr(r + 2 * q, 2), vr(tmp + 2 * q, 2)))
    return L

def phi_consts(cm):
    a('s_mov_b32 s54, 0x%x' % fbits(LOG2E)); a('s_mov_b32 s55, s54')
    a('s_mov_b32 s58, 0x%x' % fbits(1e-6))
    a('v_mov_b32 v%d, 0x%x' % (cm, fbits(-1e-6 * LOG2E))); a('v_mov_b32 v%d, 0x%x' % (cm + 1, fbits(-1e-6 * LOG2E)))

def a_path():
    vm = VM()
    make_srd(SRD_X, S_AX, 2048 * 1024)
    make_srd(SRD_W, S_AW, 512 * 3072)
    a('s_lshl_b32 s71, s29, 11')
    a('s_lshl_b32 s70, s29, 14'); a('s_add_u32 s70, s70, 0x%x' % WO_BASE)
    a('s_lshl_b32 s52, s27, 7'); a('s_lshl_b32 s53, s29, 5'); a('s_add_u32 s52, s52, s53')
    a('v_add_u32 v2, s52, v16')
    a('v_lshlrev_b32 v2, 10, v2')
    a('v_xor_b32 v19, v20, v18')
    a('v_lshl_add_u32 v2, v19, 4, v2')
    a('v_xor_b32 v3, 64, v2')
    a('v_add_u32 v3, 8192, v3')
    if OPT['rot']:
        rot_off('s57')
        for c in range(8):
            a('s_add_u32 s56, s57, %d' % c); a('s_and_b32 s56, s56, 7')
            a('s_mul_i32 s%d, s56, 0x30000' % (A_ROT + c)); a('s_lshl_b32 s%d, s56, 7' % (A_ROT + 8 + c))
    def em(L):
        for it in L: a(it[0]); it[1]()
    stamp('A_predma', True)
    em(a_dma_x(0, vm)); em(a_dma_w(0, vm))
    stamp('A_dma0', True)
    make_srd(SRD_O, S_AO, 512 * 1024)
    data_prefetch(vm)
    dm = []
    for st in range(1, 4): dm += a_dma_x(st, vm) + a_dma_w(st, vm)
    dm += a_dma_w(4, vm)
    setup = wfrag_base_items()
    for hh in range(4):
        setup += ['v_xor_b32 v%d, %d, v9' % (10 + hh, hh << 5), 'v_add_u32 v%d, 0x10000, v%d' % (14 + hh, 10 + hh)]
    setup += ['v_and_b32 v21, 15, v1', 'v_lshlrev_b32 v4, 7, v21', 'v_bfe_u32 v22, v1, 1, 3', 'v_xor_b32 v22, v22, v18',
              'v_lshl_add_u32 v4, v22, 4, v4', 'v_add_u32 v4, s70, v4', 'v_xor_b32 v5, 64, v4']
    setup += ['v_mov_b32 v%d, 0x%x' % (r, fbits(1e-6)) for r in range(A_K, A_K + 32)]
    setup += ['v_mov_b32 v%d, 0' % r for r in range(A_V, A_V + 32)]
    setup += ['v_mov_b32 v%d, 0x%x' % (r, fbits(1e-6)) for r in range(A_Q, A_Q + 32)]
    setup += wo_voff_items(6, 180, 62)
    step = len(setup) / float(len(dm) + 1)
    weave(setup, [(dm, 2, step)])
    stamp('A_issued')
    zero_signal(len(vm.q))
    vm.wait('W0')
    a('s_barrier')
    stamp('A_first')
    for it in a_xreads(0) + a_reads(A_F[0], 0, 0): a(it)
    a('s_waitcnt lgkmcnt(0)')
    for st in range(12):
        d0 = []; d1 = []
        if st + 4 <= 7: d0 = a_dma_x(st + 4, vm)
        if st == 5: d0 = [(init_load(244, 245), lambda: vm.issue('init'))]
        if st >= 8:
            k = st - 8
            wl = wo_dma_list(4 * k, 4 * k + 4, 6, 59)
            d0 = [(x, lambda: vm.issue('wo')) for x in wl[:2]]; d1 = [(x, lambda: vm.issue('wo')) for x in wl[2:]]
        if st + 5 <= 11: d1 = a_dma_w(st + 5, vm)
        weave(a_mfmas(A_F[0], st, 0), [(a_reads(A_F[1], st, 1), 0, 1), (d0, 1, 4)])
        a('s_waitcnt lgkmcnt(0)')
        if st + 1 <= 11: vm.wait_all_of(['W%d' % (st + 1), 'x%d' % (st + 1)])
        if st == 10: vm.wait('atom')
        a('s_barrier')
        if st < 8: stamp('stA%d' % st)
        if st == 10:
            a('s_cmp_eq_u32 s29, 0')
            a('s_cbranch_scc0 L_A_nosig16')
            a('s_lshl_b32 s52, s28, 8')
            a('v_mov_b32 v180, s52'); a('v_mov_b32 v181, 1')
            a('s_mov_b64 exec, 1')
            a('global_atomic_add v180, v181, s[%d:%d] sc1' % (S_WS, S_WS + 1))
            a('s_mov_b64 exec, -1')
            a.label('L_A_nosig16')
        rd = []
        if st + 1 <= 7: rd += a_xreads(st + 1)
        if st + 1 <= 11: rd += a_reads(A_F[0], st + 1, 0)
        weave(a_mfmas(A_F[1], st, 1), [(rd, 0, 0.8), (d1, 1, 4)])
        a('s_waitcnt lgkmcnt(0)')
        if st == 7:
            stamp('A_pass1')
            a_epi_k(vm)
            stamp('A_epik')
    stamp('A_pass2')
    a_epi_q(vm)
    a('s_lshl_b32 s52, s27, 7'); a('s_lshl_b32 s53, s29, 5'); a('s_add_u32 s52, s52, s53')
    a('s_lshl_b32 s74, s52, 11')
    a('s_mov_b32 s75, 11')
    publish_signal(0)
    a('s_branch L_P2')

def a_epi_k(vm):
    KP, VP = 184, 200
    TMP = 216; CM = 220; ONES = 224; KVR = 228; ZR = 246
    phi_consts(CM)
    for q in range(4): a('v_mov_b32 v%d, 0x3f803f80' % (ONES + q))
    for h in range(4):
        for bb in range(2):
            r = A_K + (bb * 4 + h) * 4
            t = TMP if bb == 0 else 228
            for it in phi4(r, CM, t): a(it)
            a('v_cvt_pk_bf16_f32 v%d, v%d, v%d' % (KP + 4 * h + 2 * bb, r, r + 1))
            a('v_cvt_pk_bf16_f32 v%d, v%d, v%d' % (KP + 4 * h + 2 * bb + 1, r + 2, r + 3))
            r = A_V + (bb * 4 + h) * 4
            a('v_cvt_pk_bf16_f32 v%d, v%d, v%d' % (VP + 4 * h + 2 * bb, r, r + 1))
            a('v_cvt_pk_bf16_f32 v%d, v%d, v%d' % (VP + 4 * h + 2 * bb + 1, r + 2, r + 3))
        a('v_mfma_f32_16x16x32_bf16 %s, %s, %s, 0' % (vr(A_V + 4 * h, 4), vr(VP + 4 * h, 4), vr(KP + 4 * h, 4)))
        a('v_mfma_f32_16x16x32_bf16 %s, %s, %s, 0' % (vr(A_K + 4 * h, 4), vr(ONES, 4), vr(KP + 4 * h, 4)))
    a('v_lshlrev_b32 v%d, 4, v1' % TMP)
    a('s_lshl_b32 s52, s29, 12')
    a('v_add_u32 v%d, s52, v%d' % (TMP + 1, TMP))
    a('v_lshlrev_b32 v%d, 2, v1' % (TMP + 2))
    a('s_lshl_b32 s52, s29, 10')
    a('v_add_u32 v%d, s52, v%d' % (TMP + 3, TMP + 2))
    a('v_add_u32 v%d, %d, v%d' % (TMP + 1, A_SCR, TMP + 1))
    for h in range(4):
        a('ds_write_b128 v%d, %s offset:%d' % (TMP + 1, vr(A_V + 4 * h, 4), h * 1024))
        a('ds_write_b32 v%d, v%d offset:%d' % (TMP + 3, A_K + 4 * h, A_ZSCR + h * 256))
    a('s_lshl_b32 s52, s29, 10'); a('s_add_u32 s52, s52, %d' % A_SCR)
    a('v_add_u32 v%d, s52, v%d' % (TMP, TMP))
    a('s_lshl_b32 s52, s29, 8')
    a('v_add_u32 v%d, s52, v%d' % (TMP + 2, TMP + 2))
    a('s_waitcnt lgkmcnt(0)')
    a('s_barrier')
    for w in range(4):
        a('ds_read_b128 %s, v%d offset:%d' % (vr(KVR + 4 * w, 4), TMP, w * 4096))
        a('ds_read_b32 v%d, v%d offset:%d' % (ZR + w, TMP + 2, A_ZSCR + w * 1024))
    vm.wait('init')
    init_check('A', 244, 245)
    a('v_and_b32 v%d, 15, v1' % TMP); a('v_lshlrev_b32 v%d, 2, v%d' % (TMP, TMP))
    a('v_lshrrev_b32 v%d, 4, v1' % (TMP + 1))
    a('v_lshl_add_u32 v%d, v%d, 8, v%d' % (TMP + 1, TMP + 1, TMP))
    a('s_lshl_b32 s52, s28, 2'); a('s_add_u32 s52, s52, s29'); a('s_mul_i32 s52, s52, %d' % KVS); a('s_add_u32 s52, s52, 0x%x' % KV)
    a('s_waitcnt lgkmcnt(0)')
    for q in range(4):
        a('v_add_f32 v%d, v%d, v%d' % (KVR + q, KVR + q, KVR + 4 + q))
        a('v_add_f32 v%d, v%d, v%d' % (KVR + 8 + q, KVR + 8 + q, KVR + 12 + q))
    a('v_add_f32 v%d, v%d, v%d' % (ZR, ZR, ZR + 1)); a('v_add_f32 v%d, v%d, v%d' % (ZR + 2, ZR + 2, ZR + 3))
    for q in range(4):
        a('v_add_f32 v%d, v%d, v%d' % (KVR + q, KVR + q, KVR + 8 + q))
    a('v_add_f32 v%d, v%d, v%d' % (ZR, ZR, ZR + 2))
    for q in range(4):
        a('buffer_atomic_add_f32 v%d, v%d, %s, s52 offen offset:%d' % (KVR + q, TMP + 1, srd(SRD_WS), q * 64)); vm.issue('atom')
    a('s_mov_b64 exec, 0xffff')
    a('buffer_atomic_add_f32 v%d, v%d, %s, s52 offen offset:1024' % (ZR, TMP, srd(SRD_WS))); vm.issue('atom')
    a('s_mov_b64 exec, -1')

def a_epi_q(vm):
    QP = 20; TMP = 216; CM = 220; KZ = 36; AOP = 68; D1 = 84; OP = 184
    KVL = 0
    phi_consts(CM)
    for h in range(4):
        for bb in range(2):
            r = A_Q + (bb * 4 + h) * 4
            t = TMP if bb == 0 else 228
            for it in phi4(r, CM, t): a(it)
            a('v_cvt_pk_bf16_f32 v%d, v%d, v%d' % (QP + 4 * h + 2 * bb, r, r + 1))
            a('v_cvt_pk_bf16_f32 v%d, v%d, v%d' % (QP + 4 * h + 2 * bb + 1, r + 2, r + 3))
        a('v_permlane16_swap_b32 v%d, v%d' % (QP + 4 * h, QP + 4 * h + 2))
        a('v_permlane16_swap_b32 v%d, v%d' % (QP + 4 * h + 1, QP + 4 * h + 3))
    a('v_and_b32 v16, 3, v1')
    a('v_bfe_u32 v17, v1, 3, 1')
    a('v_lshl_add_u32 v16, v17, 2, v16')
    a('v_bfe_u32 v17, v1, 2, 1')
    a('v_lshl_add_u32 v16, v17, 3, v16')
    a('v_bfe_u32 v17, v1, 4, 1')
    a('v_cmp_eq_u32 vcc, 1, v17')
    a('v_cndmask_b32_e64 v16, v16, 16, vcc')
    a('v_lshlrev_b32 v16, 6, v16')
    a('v_lshrrev_b32 v17, 5, v1')
    a('v_lshl_add_u32 v19, v17, 5, v16')
    a('v_lshlrev_b32 v18, 4, v1')
    a('s_lshl_b32 s52, s28, 2'); a('s_add_u32 s52, s52, s29'); a('s_mul_i32 s52, s52, %d' % KVS); a('s_add_u32 s52, s52, 0x%x' % KV)
    a('s_mul_i32 s53, s29, %d' % KVS)
    stamp('A_epiq')
    a('s_cmp_eq_u32 s29, 0')
    a('s_cbranch_scc0 L_A_nopoll')
    a('s_lshl_b32 s54, s28, 8')
    a('v_mov_b32 v16, s54')
    spin_wait('v16', S_WS, 16, 'cnt16', 17)
    a.label('L_A_nopoll')
    a('s_barrier')
    stamp('A_sync16')
    a('s_add_u32 m0, s53, %d' % KVL)
    a('buffer_load_dwordx4 v18, %s, s52 offen sc1 lds' % srd(SRD_WS))
    a('s_add_u32 m0, s53, %d' % (KVL + 1024))
    a('s_add_u32 s52, s52, 1024')
    a('s_mov_b64 exec, 0xf')
    a('buffer_load_dwordx4 v18, %s, s52 offen sc1 lds' % srd(SRD_WS))
    a('s_mov_b64 exec, -1')
    a('s_lshl_b32 s52, s28, 12')
    a('v_lshlrev_b32 v16, 4, v1'); a('v_add_u32 v16, s52, v16')
    a('s_lshl_b32 s53, s27, 17'); a('s_lshl_b32 s54, s29, 15'); a('s_add_u32 s53, s53, s54'); a('s_add_u32 s53, s53, 0x%x' % CH)
    a('s_waitcnt vmcnt(0)')
    a('s_barrier')
    for h in range(4):
        a('ds_read_b128 %s, v19 offset:%d' % (vr(KZ + 8 * h, 4), KVL + h * KVS))
        a('ds_read_b128 %s, v19 offset:%d' % (vr(KZ + 8 * h + 4, 4), KVL + h * KVS + 16))
    for h in range(4):
        a('s_waitcnt lgkmcnt(%d)' % (6 - 2 * h))
        for q in range(4):
            a('v_cvt_pk_bf16_f32 v%d, v%d, v%d' % (AOP + 4 * h + q, KZ + 8 * h + 2 * q, KZ + 8 * h + 2 * q + 1))
        a('v_mfma_f32_32x32x16_bf16 %s, %s, %s, 0' % (vr(D1 + 16 * h, 16), vr(AOP + 4 * h, 4), vr(QP + 4 * h, 4)))
    a('s_mov_b32 s58, 0x%x' % fbits(1e-6))
    for h in range(4):
        d = D1 + 16 * h
        a('v_add_f32 v%d, s58, v%d' % (d + 8, d + 8))
        a('v_rcp_f32 v%d, v%d' % (d + 8, d + 8))
        for q in range(4):
            a('v_pk_mul_f32 %s, %s, %s op_sel_hi:[1,0]' % (vr(d + 2 * q, 2), vr(d + 2 * q, 2), vr(d + 8, 2)))
        for q in range(4):
            a('v_cvt_pk_bf16_f32 v%d, v%d, v%d' % (OP + 4 * h + q, d + 2 * q, d + 2 * q + 1))
        a('buffer_store_dwordx4 %s, v16, %s, s53 offen offset:%d sc1' % (vr(OP + 4 * h, 4), srd(SRD_WS), h * 1024))
    stamp('A_o')

def phase2():
    a.label('L_P2')
    make_srd(SRD_OUT, S_OUT, 2048 * 2048)
    a('s_lshl_b32 s52, s26, 4'); a('s_add_u32 s52, s52, s27'); a('s_lshl_b32 s52, s52, 2'); a('s_add_u32 s52, s52, s29')
    a('s_lshl_b32 s52, s52, 15'); a('s_add_u32 s52, s52, 0x%x' % CH)
    a('v_lshlrev_b32 v2, 4, v1')
    a('v_lshrrev_b32 v3, 5, v1')
    a('v_lshlrev_b32 v3, 10, v3')
    a('v_bfe_u32 v4, v1, 2, 2')
    a('v_lshl_add_u32 v3, v4, 7, v3')
    a('v_bfe_u32 v4, v1, 4, 1')
    a('v_lshl_add_u32 v3, v4, 5, v3')
    a('v_and_b32 v4, 3, v1')
    a('v_lshl_add_u32 v3, v4, 3, v3')
    a('v_bfe_u32 v4, v1, 3, 1')
    a('v_lshlrev_b32 v4, 6, v4')
    a('v_xor_b32 v3, v3, v4')
    a('v_add_u32 v3, %d, v3' % WO_BASE)
    a('v_xor_b32 v4, 64, v3')
    WF = [20, 28, 36]; ACC = 48
    def reads(h, F):
        return ['ds_read_b64_tr_b16 %s, v%d offset:%d' % (vr(F + 4 * tl + 2 * jj, 2), 3 + tl, h * 2048 + jj * 512)
                for tl in range(2) for jj in range(2)]
    a('s_barrier')
    stamp('P2_go')
    def load(h):
        t = ''
        if h % 4 == 0 and h: t = 's_add_u32 s52, s52, 4096\n'
        return t + 'buffer_load_dwordx4 %s, v2, %s, s52 offen offset:%d sc1' % (ar(4 * h, 4), srd(SRD_WS), (h % 4) * 1024)
    PRE = OPT['p2pre']
    for h in range(PRE): a(load(h))
    for it in reads(0, WF[0]) + reads(1, WF[1]): a(it)
    issued = PRE
    for h in range(32):
        F = WF[h % 3]
        nxt = reads(h + 2, WF[(h + 2) % 3]) if h + 2 < 32 else []
        for it in nxt: a(it)
        outstanding = (8 if h + 2 < 32 else (4 if h + 1 < 32 else 0))
        a('s_waitcnt vmcnt(%d) lgkmcnt(%d)' % (issued - 1 - h, outstanding))
        for tl in range(2):
            c = vr(ACC + 16 * tl, 16) if h else '0'
            a('v_mfma_f32_32x32x16_bf16 %s, %s, %s, %s' % (vr(ACC + 16 * tl, 16), vr(F + 4 * tl, 4), ar(4 * h, 4), c))
            if tl == 0 and issued < 32:
                a(load(issued)); issued += 1
    stamp('P2_gemm')
    PK = 84
    a('v_and_b32 v5, 31, v1')
    a('v_and_b32 v6, 7, v5')
    a('v_lshlrev_b32 v7, 7, v5')
    a('s_lshl_b32 s52, s29, 12')
    a('v_add_u32 v7, s52, v7')
    a('v_lshrrev_b32 v8, 5, v1')
    a('v_lshl_add_u32 v7, v8, 3, v7')
    for g in range(8):
        a('v_xor_b32 v9, %d, v6' % g)
        a('v_lshl_add_u32 v%d, v9, 4, v7' % (116 + g))
    for tl in range(2):
        for q in range(4):
            d = ACC + 16 * tl + 4 * q; p = PK + 2 * (tl * 4 + q)
            a('v_cvt_pk_bf16_f32 v%d, v%d, v%d' % (p, d, d + 1))
            a('v_cvt_pk_bf16_f32 v%d, v%d, v%d' % (p + 1, d + 2, d + 3))
            a('ds_write_b64 v%d, %s' % (116 + tl * 4 + q, vr(p, 2)))
    a('v_lshrrev_b32 v5, 3, v1')
    a('v_and_b32 v6, 7, v1')
    a('v_xor_b32 v8, v5, v6')
    a('v_lshlrev_b32 v8, 4, v8')
    a('v_lshl_add_u32 v8, v5, 7, v8')
    a('v_add_u32 v8, s52, v8')
    a('v_lshlrev_b32 v9, s75, v5')
    a('v_lshl_add_u32 v9, v6, 4, v9')
    a('s_lshl_b32 s53, s28, 7'); a('s_add_u32 s74, s74, s53')
    a('s_lshl_b32 s54, 8, s75')
    a('s_waitcnt lgkmcnt(0)')
    for it in range(4):
        a('ds_read_b128 %s, v8 offset:%d' % (vr(100 + 4 * it, 4), it * 1024))
    for it in range(4):
        a('s_waitcnt lgkmcnt(%d)' % (3 - it))
        a('buffer_store_dwordx4 %s, v9, %s, s74 offen' % (vr(100 + 4 * it, 4), srd(SRD_OUT)))
        if it < 3: a('s_add_u32 s74, s74, s54')
    if OPT['stamps']:
        a('s_waitcnt vmcnt(0)')
        stamp('end')
        a('s_waitcnt lgkmcnt(0)')
        a('s_lshl_b32 s52, s2, 2'); a('s_add_u32 s52, s52, s29'); a('s_lshl_b32 s52, s52, 7'); a('s_add_u32 s52, s52, 0x%x' % STAMP)
        a('v_lshlrev_b32 v2, 2, v1')
        a('v_mov_b32 v3, 0')
        for i in range(13):
            a('v_cmp_eq_u32 vcc, %d, v1' % i)
            a('v_mov_b32 v4, s%d' % (76 + 2 * i))
            a('v_cndmask_b32 v3, v3, v4, vcc')
        a('s_mov_b64 exec, 0x1fff')
        a('buffer_store_dword v3, v2, %s, s52 offen' % srd(SRD_WS))
    a('s_endpgm')

hdr = open('concat_heads__linear_attn_block__sliding_local_dilated__prompt.s.ref').read().split('\n')
for l in hdr:
    if l.startswith('; @launch'): break
    a(l)
if OPT['empty2']:
    a('; @launch kernel=%s grid=(256,1,1) block=(256,1,1) lds=%d' % (KNAME, LDS_BYTES))
    for i in range(OPT['empty2']):
        a('; @launch kernel=empty_kernel grid=(256,1,1) block=(256,1,1) lds=0')
else:
    a('; @launch grid=(256,1,1) block=(256,1,1) lds=%d' % LDS_BYTES)
a('.amdgcn_target "amdgcn-amd-amdhsa--gfx950"')
if OPT['pf']: OPT['pf'] = 6
kernel_begin(a, KNAME)
body_start = len(a.lines)
prologue()
base = NSTAMP[0]
a_path()
NSTAMP[0] = base
b_path()
NSTAMP[0] = 10
phase2()
a.label('L_kend')
body = fix_hazards(a.lines[body_start:], verbose=True)
a.lines = a.lines[:body_start] + body
if OPT['empty2']:
    kernel_begin(a, 'empty_kernel')
    a('s_endpgm')
kernel_desc(a, KNAME, 384, 102, 256)
if OPT['empty2']:
    kernel_desc(a, 'empty_kernel', 64, 32)
open(OPT['out'], 'w').write(a.text())
print('lines', len(a.lines))
```

```python
import sys, struct
from asmlib import *

KNAME = 'concat_heads__linear_attn_block__sliding_local_dilated__prompt_kernel'
OPT = dict(stamps=0, ststamps=0, out='k.s', spin=1 << 20, empty2=0, p2pre=8,
           rot=0, map84=0, delay=0, apre=5, asyncpoll=1)
for arg in sys.argv[1:]:
    k, v = arg.split('=')
    OPT[k] = int(v, 0) if k not in ('out',) else v

def fbits(x): return struct.unpack('<I', struct.pack('<f', x))[0]
LOG2E = 1.4426950408889634
NEG = -1.0e30

CNT16 = 0x0000; CNT8 = 0x1000; KV = 0x4000; KVS = 1280; CH = 0x100000; STAMP = 0x600000
WS_SIZE = 0x800000
NZERO_WG = 16
WO_BASE = 98304
B_SLOT = 43008
A_SLOT = 16384
A_RING = 4096
A_SCR = 86016
A_ZSCR = 94208
A_KVL = 8192
LDS_BYTES = 163840

S_AX, S_AW, S_AO, S_BX, S_BW, S_BO, S_OUT, S_DBG, S_WS = 8, 10, 12, 14, 16, 18, 20, 22, 24
SRD_X, SRD_W, SRD_O, SRD_WS, SRD_OUT = 32, 36, 40, 44, 48
def srd(r): return 's[%d:%d]' % (r, r + 3)
def vr(r, n=1): return 'v%d' % r if n == 1 else 'v[%d:%d]' % (r, r + n - 1)
def ar(r, n=1): return 'a%d' % r if n == 1 else 'a[%d:%d]' % (r, r + n - 1)

a = Asm()
NSTAMP = [0]
def stamp(name):
    if not OPT['stamps']: return
    isst = name.startswith('st') and name != 'start'
    if OPT['ststamps']:
        if not (name in ('start', 'A_first', 'B_first', 'end') or isst): return
        if name == 'end': NSTAMP[0] = 12
    elif isst: return
    i = NSTAMP[0]; NSTAMP[0] += 1
    assert i < 13
    a('s_memtime s[%d:%d]   ; stamp %s' % (76 + 2 * i, 77 + 2 * i, name))

class VM:
    def __init__(self): self.q = []
    def issue(self, tag, n=1): self.q += [tag] * n
    def count_after(self, tag):
        if tag not in self.q: return None
        idx = max(i for i, t in enumerate(self.q) if t == tag)
        return len(self.q) - 1 - idx
    def wait(self, tag):
        n = self.count_after(tag)
        if n is None: return
        assert n <= 63
        a('s_waitcnt vmcnt(%d)   ; %s' % (n, tag))
        self.q = self.q[len(self.q) - n:] if n else []
    def wait_all_of(self, tags):
        ns = [(self.count_after(t), t) for t in tags if self.count_after(t) is not None]
        if ns: self.wait(min(ns)[1])

def make_srd(r, sp, size):
    a('s_mov_b32 s%d, s%d' % (r, sp)); a('s_mov_b32 s%d, s%d' % (r + 1, sp + 1))
    a('s_mov_b32 s%d, 0x%x' % (r + 2, size)); a('s_mov_b32 s%d, 0x20000' % (r + 3))

def em(it):
    if isinstance(it, tuple):
        a(it[0]); it[1]()
    else: a(it)

def weave(main, streams):
    slots = [[] for _ in main]; tail = []
    for items, first, step in streams:
        for k, it in enumerate(items):
            pos = int(first + k * step)
            (slots[pos] if pos < len(main) else tail).append(it)
    for m, sl in zip(main, slots):
        em(m)
        for it in sl: em(it)
    for it in tail: em(it)

def spin_wait(vaddr, base, cmp_lit, name, vd):
    L = 'L_spin_' + name; D = 'L_spun_' + name
    a('s_mov_b32 s56, 0')
    a.label(L)
    a('global_load_dword v%d, %s, s[%d:%d] sc1' % (vd, vaddr, base, base + 1))
    a('s_waitcnt vmcnt(0)')
    a('v_readfirstlane_b32 s57, v%d' % vd)
    a('s_add_u32 s56, s56, 1')
    a('s_cmp_ge_u32 s56, 0x%x' % OPT['spin'])
    a('s_cbranch_scc1 %s' % D)
    a('s_cmp_lt_u32 s57, %d' % cmp_lit)
    a('s_cbranch_scc1 %s' % L)
    a.label(D)

def flag_check(name, vaddr, base, lit, vd):
    a('v_readfirstlane_b32 s57, v%d' % vd)
    a('s_cmp_ge_u32 s57, %d' % lit)
    a('s_cbranch_scc1 L_ok_%s' % name)
    spin_wait(vaddr, base, lit, name, vd)
    a.label('L_ok_%s' % name)

def init_load(vz, vd):
    return 'v_mov_b32 v%d, 0\nglobal_load_dword v%d, v%d, s[%d:%d] sc1' % (vz, vd, vz, S_DBG, S_DBG + 1)

def rot_off(dst):
    m = OPT['rot']
    if m == 0: a('s_mov_b32 %s, 0' % dst)
    elif m == 1:
        a('s_and_b32 %s, s2, 3' % dst); a('s_lshl_b32 %s, %s, 1' % (dst, dst))
    elif m == 2:
        a('s_xor_b32 %s, s27, s28' % dst); a('s_and_b32 %s, %s, 1' % (dst, dst)); a('s_lshl_b32 %s, %s, 2' % (dst, dst))
    elif m == 3:
        a('s_and_b32 %s, s2, 3' % dst)
    elif m == 4:
        a('s_and_b32 %s, s2, 1' % dst); a('s_lshl_b32 %s, %s, 2' % (dst, dst))

def adv_w(r): return 's_add_u32 s%d, s%d, 0x30000\ns_cmp_eq_u32 s%d, 0x180000\ns_cselect_b32 s%d, 0, s%d' % (r, r, r, r, r)
def adv_x(r): return 's_add_u32 s%d, s%d, 128\ns_and_b32 s%d, s%d, 1023' % (r, r, r, r)

def prologue():
    a('s_cmp_ge_u32 s2, 256')
    a('s_cbranch_scc0 L_go')
    a('s_endpgm')
    a.label('L_go')
    a('s_load_dwordx16 s[8:23], s[0:1], 0')
    a('s_load_dwordx2 s[24:25], s[0:1], 64')
    stamp('start')
    if OPT['delay']:
        a('s_mov_b32 s52, %d' % OPT['delay'])
        a.label('L_delay')
        for i in range(8): a('v_mov_b32 v3, v3')
        a('s_sub_u32 s52, s52, 1')
        a('s_cmp_lg_u32 s52, 0')
        a('s_cbranch_scc1 L_delay')
    a('v_and_b32 v1, 63, v0')
    a('v_lshrrev_b32 v2, 6, v0')
    a('s_lshr_b32 s26, s2, 2')
    a('v_readfirstlane_b32 s29, v2')
    a('s_and_b32 s26, s26, 1')
    a('s_and_b32 s52, s2, 3')
    a('s_lshr_b32 s53, s2, 3')
    a('s_lshr_b32 s30, s53, 3')
    a('s_lshl_b32 s54, s52, 2')
    a('s_add_u32 s30, s30, s54')
    a('s_and_b32 s31, s53, 7')
    if OPT['map84']:
        a('s_and_b32 s54, s52, 1'); a('s_lshl_b32 s54, s54, 3'); a('s_lshr_b32 s27, s53, 2'); a('s_add_u32 s27, s27, s54')
        a('s_lshr_b32 s54, s52, 1'); a('s_lshl_b32 s54, s54, 2'); a('s_and_b32 s28, s53, 3'); a('s_add_u32 s28, s28, s54')
    else:
        a('s_mov_b32 s27, s30'); a('s_mov_b32 s28, s31')
    a('v_lshrrev_b32 v16, 3, v1')
    a('s_lshl_b32 s52, s29, 4')
    a('v_add_u32 v17, s52, v16')
    a('v_mul_u32_u24 v17, 3072, v17')
    a('v_lshrrev_b32 v18, 4, v1')
    a('v_and_b32 v19, 1, v18')
    a('v_lshlrev_b32 v19, 1, v19')
    a('v_and_b32 v20, 7, v1')
    a('v_xor_b32 v19, v19, v20')
    a('v_lshlrev_b32 v19, 4, v19')
    a('s_lshl_b32 s52, s28, 7')
    a('v_add3_u32 v7, v17, v19, s52')
    a('v_xor_b32 v8, 64, v7')
    a('v_add_u32 v8, %d, v8' % (8 * 3072 - 1024))
    a('s_waitcnt lgkmcnt(0)')
    make_srd(SRD_WS, S_WS, WS_SIZE)
    a('s_cmp_ge_u32 s2, %d' % NZERO_WG)
    a('s_cbranch_scc1 L_nozero')
    a('v_mov_b32 v24, 0'); a('v_mov_b32 v25, 0'); a('v_mov_b32 v26, 0'); a('v_mov_b32 v27, 0')
    a('v_lshlrev_b32 v22, 4, v1')
    a('s_lshl_b32 s52, s2, 12')
    a('s_lshl_b32 s53, s29, 10')
    a('s_add_u32 s52, s52, s53')
    a('buffer_store_dwordx4 v[24:27], v22, %s, s52 offen sc1' % srd(SRD_WS))
    a.label('L_nozero')
    a('s_cmp_eq_u32 s26, 0')
    a('s_cbranch_scc0 L_B')

def wfrag_base_items():
    return ['v_lshlrev_b32 v9, 10, v18', 'v_bfe_u32 v21, v1, 2, 2', 'v_lshl_add_u32 v9, v21, 7, v9',
            'v_and_b32 v21, 3, v1', 'v_lshl_add_u32 v9, v21, 3, v9', 'v_bfe_u32 v21, v1, 3, 2', 'v_lshl_add_u32 v9, v21, 5, v9']

def zero_signal(vm_after):
    L = a.newlabel('L_nosig')
    a('s_cmp_ge_u32 s2, %d' % NZERO_WG)
    a('s_cbranch_scc1 %s' % L)
    a('s_waitcnt vmcnt(%d)' % vm_after)
    a('s_barrier')
    a('s_cmp_eq_u32 s29, 0')
    a('s_cbranch_scc0 %s' % L)
    a('v_mov_b32 v244, 0'); a('v_mov_b32 v245, 1')
    a('s_mov_b64 exec, 1')
    a('global_atomic_add v244, v245, s[%d:%d] sc1' % (S_DBG, S_DBG + 1))
    a('s_mov_b64 exec, -1')
    a.label(L)

def wo_group(g, vwo):
    L = ['s_add_u32 m0, s70, 0x%x\ns_mov_b32 s59, 0x%x\nbuffer_load_dwordx4 v%d, %s, s59 offen lds' % (g * 4096, g * 32768, vwo, srd(SRD_O))]
    for q in range(1, 4):
        L.append('buffer_load_dwordx4 v%d, %s, s59 offen offset:%d lds' % (vwo + q, srd(SRD_O), q * 1024))
    return L

def wo_voff_items(vwo, vt, st):
    return ['v_lshrrev_b32 v%d, 3, v1' % vt,
            's_lshl_b32 s%d, s29, 7' % st,
            'v_add_u32 v%d, s%d, v%d' % (vt, st, vt),
            'v_lshlrev_b32 v%d, 10, v%d' % (vt, vt),
            'v_bfe_u32 v%d, v1, 4, 1' % (vt + 1),
            'v_lshlrev_b32 v%d, 2, v%d' % (vt + 1, vt + 1),
            'v_and_b32 v%d, 7, v1' % (vt + 2),
            'v_xor_b32 v%d, v%d, v%d' % (vt + 1, vt + 1, vt + 2),
            'v_lshlrev_b32 v%d, 4, v%d' % (vt + 1, vt + 1),
            's_lshl_b32 s%d, s31, 7' % st,
            'v_add3_u32 v%d, v%d, v%d, s%d' % (vwo, vt, vt + 1, st),
            'v_add_u32 v%d, %d, v%d' % (vwo + 1, 7168, vwo),
            'v_add_u32 v%d, %d, v%d' % (vwo + 2, 2 * 7168, vwo),
            'v_add_u32 v%d, %d, v%d' % (vwo + 3, 3 * 7168, vwo),
            's_lshl_b32 s70, s29, 14',
            's_add_u32 s70, s70, 0x%x' % WO_BASE]

def publish_signal(br):
    a('s_waitcnt vmcnt(0)')
    a('s_barrier')
    stamp('published')
    a('s_cmp_eq_u32 s29, 0')
    a('s_cbranch_scc0 L_pub_%d' % br)
    a('s_lshl_b32 s59, s27, 8'); a('s_add_u32 s59, s59, 0x%x' % (CNT8 + br * 16 * 256))
    a('s_lshl_b32 s58, s30, 8'); a('s_add_u32 s58, s58, 0x%x' % (CNT8 + br * 16 * 256))
    a('v_mov_b32 v16, s59'); a('v_mov_b32 v18, 1'); a('v_mov_b32 v19, s58')
    a('s_mov_b64 exec, 1')
    a('global_atomic_add v16, v18, s[%d:%d] sc1' % (S_WS, S_WS + 1))
    a('s_mov_b64 exec, -1')
    spin_wait('v19', S_WS, 8, 'cnt8_%d' % br, 17)
    a.label('L_pub_%d' % br)

B_F = [dict(x=20, w=56), dict(x=68, w=104)]
B_Q, B_K, B_V = 116, 148, 184
B_CPREV, B_CCUR, B_CH0, B_CH1, B_ONES, B_WO = 220, 224, 228, 232, 236, 240

def b_dma_w(base, lit=0):
    L = []
    for seg in (1, 2, 0):
        L.append('s_add_u32 m0, %s, 0x%x\nbuffer_load_dwordx4 v7, %s, s61 offen offset:%d lds' %
                 (base, lit + seg * 8192 - seg * 1024, srd(SRD_W), seg * 1024))
        L.append('buffer_load_dwordx4 v8, %s, s61 offen offset:%d lds' % (srd(SRD_W), (seg + 1) * 1024))
    L[-1] += '\n' + adv_w(61)
    return L
def b_dma_x(bx, bh, lit=0):
    L = ['s_add_u32 m0, %s, 0x%x\nbuffer_load_dwordx4 v2, %s, s60 offen lds' % (bx, lit, srd(SRD_X))]
    for ii in range(1, 4):
        L.append('buffer_load_dwordx4 v%d, %s, s60 offen offset:%d lds' % (2 + ii, srd(SRD_X), ii * 1024))
    L.append('s_add_u32 m0, %s, 0x%x\ns_mov_b64 exec, 0xffffffff\nbuffer_load_dwordx4 v6, %s, s60 offen lds\ns_mov_b64 exec, -1\n%s' %
             (bh, lit, srd(SRD_X), adv_x(60)))
    return L

def b_reads(F, vx, vw, kk):
    L = []
    for seg in range(3):
        for jj in range(2):
            L.append('ds_read_b64_tr_b16 %s, v%d offset:%d' % (vr(F['w'] + seg * 4 + jj * 2, 2), vw, seg * 8192 + kk * 4096 + jj * 512))
    for t in range(9):
        L.append('ds_read_b128 %s, v%d offset:%d' % (vr(F['x'] + 4 * t, 4), vx, t * 2048))
    return L

def b_mfmas(F):
    L = []
    for t in range(9):
        x = vr(F['x'] + 4 * t, 4)
        if t < 8:
            L.append('v_mfma_f32_16x16x32_bf16 %s, %s, %s, %s' % (vr(B_Q + 4 * t, 4), vr(F['w'], 4), x, vr(B_Q + 4 * t, 4)))
        L.append('v_mfma_f32_16x16x32_bf16 %s, %s, %s, %s' % (vr(B_K + 4 * t, 4), vr(F['w'] + 4, 4), x, vr(B_K + 4 * t, 4)))
        L.append('v_mfma_f32_16x16x32_bf16 %s, %s, %s, %s' % (vr(B_V + 4 * t, 4), x, vr(F['w'] + 8, 4), vr(B_V + 4 * t, 4)))
    return L

def b_stage(dma_x, dma_w, vmn, last=False, loop=None):
    misc0 = []
    if not last:
        misc0 += ['v_add_u32 v15, s65, v10', 'v_add_u32 v16, s65, v12']
    if dma_w: misc0 += ['s_add_u32 s69, s64, s73']
    dx = b_dma_x('s67', 's68') if dma_x else []
    pre = ['s_add_u32 s67, s66, s71\ns_add_u32 s68, s66, s72'] if dma_x else []
    weave(b_mfmas(B_F[0]), [(pre, 0, 1), (b_reads(B_F[1], 13, 14, 1), 0, 1), (dx, 3, 5), (misc0, 16, 2)])
    a('s_waitcnt lgkmcnt(0)')
    if vmn is not None: a('s_waitcnt vmcnt(%d)' % vmn)
    a('s_barrier')
    stamp('stB')
    rd = b_reads(B_F[0], 15, 16, 0) if not last else []
    dw = b_dma_w('s69') if dma_w else []
    misc1 = []
    if not last:
        misc1 = ['v_add_u32 v13, s65, v11', 'v_mov_b32 v14, v16',
                 's_mov_b32 s53, s64\ns_mov_b32 s64, s65', 's_mov_b32 s65, s66\ns_mov_b32 s66, s53']
    if loop: misc1 += ['s_add_u32 s74, s74, 1\ns_cmp_lt_u32 s74, %d' % loop]
    weave(b_mfmas(B_F[1]), [(rd, 0, 1), (dw, 2, 4), (misc1, 15 if not dw else 23, 2 if not dw else 0)])
    if not last: a('s_waitcnt lgkmcnt(0)')

def b_path():
    a.label('L_B')
    make_srd(SRD_X, S_BX, 2048 * 1024)
    make_srd(SRD_W, S_BW, 512 * 3072)
    a('s_lshl_b32 s71, s29, 12')
    a('s_lshl_b32 s72, s29, 9'); a('s_add_u32 s72, s72, 16384')
    a('s_lshl_b32 s73, s29, 11'); a('s_add_u32 s73, s73, 18432')
    rot_off('s57')
    a('s_lshl_b32 s60, s57, 7'); a('s_mul_i32 s61, s57, 0x30000')
    for it in b_dma_w('s73', 0): a(it)
    a('s_lshl_b32 s52, s27, 7')
    a('s_and_b32 s53, s29, 1')
    a('s_lshr_b32 s54, s29, 1')
    a('s_lshl_b32 s55, s53, 6')
    a('s_add_u32 s55, s55, s54')
    a('s_add_u32 s55, s55, s52')
    a('s_lshl_b32 s55, s55, 10')
    a('v_lshlrev_b32 v17, 11, v16')
    a('v_xor_b32 v19, v20, v18')
    a('v_lshlrev_b32 v19, 4, v19')
    a('v_add3_u32 v2, v17, v19, s55')
    a('v_xor_b32 v3, 64, v2')
    a('v_add_u32 v4, %d, v2' % (32768 - 2048))
    a('v_add_u32 v5, %d, v3' % (49152 - 3072))
    a('v_add_u32 v3, %d, v3' % (16384 - 1024))
    a('s_lshl_b32 s55, s53, 3')
    a('s_add_u32 s55, s55, s54')
    a('s_add_u32 s55, s55, s52')
    a('s_sub_u32 s55, s55, 16')
    a('s_lshl_b32 s55, s55, 10')
    a('s_lshl_b32 s56, s29, 1')
    a('v_add_u32 v19, s56, v18')
    a('v_and_b32 v19, 7, v19')
    a('v_xor_b32 v19, v19, v20')
    a('v_lshlrev_b32 v19, 4, v19')
    a('v_add3_u32 v6, v17, v19, s55')
    for it in b_dma_x('s71', 's72', 0): a(it)
    dm = b_dma_w('s73', B_SLOT) + b_dma_x('s71', 's72', B_SLOT) + b_dma_w('s73', 2 * B_SLOT)
    setup = []
    setup += wfrag_base_items()
    setup += ['v_and_b32 v21, 15, v1', 'v_lshlrev_b32 v10, 7, v21', 'v_bfe_u32 v22, v1, 1, 3', 'v_xor_b32 v22, v22, v18',
              'v_lshl_add_u32 v10, v22, 4, v10', 'v_xor_b32 v11, 64, v10',
              's_lshl_b32 s57, s29, 5', 'v_xor_b32 v12, s57, v9', 'v_add_u32 v12, 18432, v12']
    setup += ['v_mov_b32 v%d, 0' % r for r in range(B_Q, B_V + 36)]
    setup += ['s_mov_b32 s58, 0x%x' % fbits(NEG), 's_cmp_eq_u32 s27, 0\ns_cselect_b32 s57, s58, 0', 'v_mov_b32 v22, s58', 'v_lshlrev_b32 v23, 2, v18']
    for r in range(4):
        setup += ['v_add_u32 v24, %d, v23' % r, 'v_sub_u32 v25, v24, v21', 'v_sub_u32 v26, v21, v24',
                  'v_cmp_le_i32 vcc, 9, v25\nv_cndmask_b32_e64 v%d, v22, 0, vcc' % (B_CPREV + r),
                  'v_cmp_ge_u32 vcc, 7, v26\nv_cndmask_b32_e64 v%d, v22, 0, vcc' % (B_CCUR + r),
                  'v_cmp_le_i32 vcc, 1, v25\nv_cmp_ge_u32 s[54:55], 7, v24\ns_and_b64 vcc, vcc, s[54:55]\nv_cndmask_b32_e64 v%d, v22, 0, vcc' % (B_CH0 + r),
                  'v_min_f32 v%d, s57, v%d' % (B_CH0 + r, B_CH0 + r),
                  'v_min_f32 v%d, s57, v%d' % (B_CH1 + r, B_CPREV + r),
                  'v_mov_b32 v%d, 0x3f803f80' % (B_ONES + r)]
    setup += wo_voff_items(B_WO, 24, 52)
    step = len(setup) / float(len(dm) + 1)
    weave(setup, [(dm, 2, step)])
    make_srd(SRD_O, S_BO, 512 * 1024)
    stamp('B_issued')
    zero_signal(28)
    a('s_mov_b32 s64, 0'); a('s_mov_b32 s65, %d' % B_SLOT); a('s_mov_b32 s66, %d' % (2 * B_SLOT))
    a('v_mov_b32 v13, v11'); a('v_mov_b32 v14, v12')
    a('s_mov_b32 s74, 0')
    a('s_waitcnt vmcnt(17)')
    a('s_barrier')
    stamp('B_first')
    for it in b_reads(B_F[0], 10, 12, 0): a(it)
    a('s_waitcnt lgkmcnt(0)')
    if OPT['ststamps']:
        for i in range(5): b_stage(True, True, 11)
    else:
        a.label('L_Bloop')
        b_stage(True, True, 11, loop=5)
        a('s_cbranch_scc1 L_Bloop')
    b_stage(True, False, 11)
    b_stage(False, False, 0)
    b_stage(False, False, None, last=True)
    stamp('B_gemm')
    b_attention()
    a('s_lshl_b32 s52, s30, 7')
    a('s_and_b32 s53, s29, 1'); a('s_lshl_b32 s53, s53, 6')
    a('s_lshr_b32 s54, s29, 1')
    a('s_add_u32 s52, s52, s53'); a('s_add_u32 s52, s52, s54')
    a('s_lshl_b32 s74, s52, 11'); a('s_add_u32 s74, s74, 1024')
    a('s_mov_b32 s75, 12')
    publish_signal(1)

def b_attention():
    QP, KP, LV = 20, 36, (54, 64)
    S = 116; MX = 180; T = 188; P = 74; OP = 20
    wo = []
    for g in range(4): wo += wo_group(g, B_WO)
    L = []
    for t in range(8):
        L.append('v_cvt_pk_bf16_f32 v%d, v%d, v%d' % (QP + 2 * t, B_Q + 4 * t, B_Q + 4 * t + 1))
        L.append('v_cvt_pk_bf16_f32 v%d, v%d, v%d' % (QP + 2 * t + 1, B_Q + 4 * t + 2, B_Q + 4 * t + 3))
    for t in range(9):
        L.append('v_cvt_pk_bf16_f32 v%d, v%d, v%d' % (KP + 2 * t, B_K + 4 * t, B_K + 4 * t + 1))
        L.append('v_cvt_pk_bf16_f32 v%d, v%d, v%d' % (KP + 2 * t + 1, B_K + 4 * t + 2, B_K + 4 * t + 3))
    for p in range(2):
        for k, t in enumerate([8] + [4 * p + b for b in range(4)]):
            L.append('v_cvt_pk_bf16_f32 v%d, v%d, v%d' % (LV[p] + 2 * k, B_V + 4 * t, B_V + 4 * t + 1))
            L.append('v_cvt_pk_bf16_f32 v%d, v%d, v%d' % (LV[p] + 2 * k + 1, B_V + 4 * t + 2, B_V + 4 * t + 3))
    weave(L, [([init_load(244, 245)], 0, 1), (wo[:6], 4, 8)])
    for t in range(8):
        b = t & 3; p = t >> 2
        prev = t - 1 if b > 0 else 8
        cm = B_CPREV if b > 0 else (B_CH0 if p == 0 else B_CH1)
        a('v_mfma_f32_16x16x16_bf16 %s, %s, %s, %s' % (vr(S + 8 * t, 4), vr(KP + 2 * prev, 2), vr(QP + 2 * t, 2), vr(cm, 4)))
        a('v_mfma_f32_16x16x16_bf16 %s, %s, %s, %s' % (vr(S + 8 * t + 4, 4), vr(KP + 2 * t, 2), vr(QP + 2 * t, 2), vr(B_CCUR, 4)))
    L = []
    for t in range(8):
        s = S + 8 * t
        L.append('v_max3_f32 v%d, v%d, v%d, v%d' % (MX + t, s, s + 1, s + 2))
        L.append('v_max3_f32 v%d, v%d, v%d, v%d' % (T + t, s + 3, s + 4, s + 5))
    for t in range(8):
        s = S + 8 * t
        L.append('v_max3_f32 v%d, v%d, v%d, v%d' % (MX + t, MX + t, s + 6, s + 7))
    for t in range(8):
        L.append('v_max_f32 v%d, v%d, v%d' % (MX + t, MX + t, T + t))
    weave(L, [(wo[6:9], 4, 8)])
    a('s_mov_b32 s52, 0x%x' % fbits(0.25 * LOG2E))
    a('s_mov_b32 s53, s52')
    def batch(m):
        A_, B_, C_, D_ = m, m + 1, m + 2, m + 3
        return ['v_permlane16_swap_b32 v%d, v%d' % (A_, B_),
                'v_permlane16_swap_b32 v%d, v%d' % (C_, D_),
                'v_max_f32 v%d, v%d, v%d' % (A_, A_, B_),
                'v_max_f32 v%d, v%d, v%d' % (C_, C_, D_),
                'v_permlane32_swap_b32 v%d, v%d' % (A_, C_),
                'v_max_f32 v%d, v%d, v%d' % (A_, A_, C_),
                'v_mul_f32 v%d, s52, v%d' % (A_, A_),
                'v_mov_b32 v%d, v%d' % (C_, A_),
                'v_permlane32_swap_b32 v%d, v%d' % (A_, C_),
                'v_mov_b32 v%d, v%d' % (B_, A_),
                'v_mov_b32 v%d, v%d' % (D_, C_),
                'v_permlane16_swap_b32 v%d, v%d' % (A_, B_),
                'v_permlane16_swap_b32 v%d, v%d' % (C_, D_)]
    b0 = batch(MX); b1 = batch(MX + 4)
    for x, y in zip(b0, b1):
        a(x); a(y)
    L = []
    for t in range(8):
        s = S + 8 * t
        mreg = MX + (t & ~1); sel = t & 1
        for q in range(4):
            L.append('v_pk_fma_f32 %s, %s, s[52:53], %s op_sel:[0,0,%d] op_sel_hi:[1,1,%d] neg_lo:[0,0,1] neg_hi:[0,0,1]' %
                     (vr(s + 2 * q, 2), vr(s + 2 * q, 2), vr(mreg, 2), sel, sel))
        for q in range(8):
            L.append('v_exp_f32 v%d, v%d' % (s + q, s + q))
        for q in range(4):
            L.append('v_cvt_pk_bf16_f32 v%d, v%d, v%d' % (P + 4 * t + q, s + 2 * q, s + 2 * q + 1))
    weave(L, [(wo[9:16], 4, 16)])
    for t in range(8):
        b = t & 3; p = t >> 2
        a('v_mfma_f32_16x16x32_bf16 %s, %s, %s, 0' % (vr(S + 8 * t, 4), vr(LV[p] + 2 * b, 4), vr(P + 4 * t, 4)))
        a('v_mfma_f32_16x16x32_bf16 %s, %s, %s, 0' % (vr(S + 8 * t + 4, 4), vr(B_ONES, 4), vr(P + 4 * t, 4)))
    a('s_lshl_b32 s52, s28, 2'); a('s_add_u32 s52, s52, s29'); a('s_lshl_b32 s52, s52, 10')
    a('v_lshlrev_b32 v16, 4, v1'); a('v_add_u32 v16, s52, v16')
    a('s_add_u32 s53, s27, 16'); a('s_lshl_b32 s53, s53, 17'); a('s_add_u32 s53, s53, 0x%x' % CH)
    for pr in range(4):
        for u in range(2):
            t = 2 * pr + u; s = S + 8 * t
            a('v_rcp_f32 v%d, v%d' % (s + 4, s + 4))
        for u in range(2):
            t = 2 * pr + u; s = S + 8 * t
            a('v_pk_mul_f32 %s, %s, %s op_sel_hi:[1,0]' % (vr(s, 2), vr(s, 2), vr(s + 4, 2)))
            a('v_pk_mul_f32 %s, %s, %s op_sel_hi:[1,0]' % (vr(s + 2, 2), vr(s + 2, 2), vr(s + 4, 2)))
            a('v_cvt_pk_bf16_f32 v%d, v%d, v%d' % (OP + 4 * pr + 2 * u, s, s + 1))
            a('v_cvt_pk_bf16_f32 v%d, v%d, v%d' % (OP + 4 * pr + 2 * u + 1, s + 2, s + 3))
        a('v_permlane16_swap_b32 v%d, v%d' % (OP + 4 * pr, OP + 4 * pr + 2))
        a('v_permlane16_swap_b32 v%d, v%d' % (OP + 4 * pr + 1, OP + 4 * pr + 3))
        a('s_add_u32 s54, s53, 0x%x' % (pr * 32768))
        a('buffer_store_dwordx4 %s, v16, %s, s54 offen sc1' % (vr(OP + 4 * pr, 4), srd(SRD_WS)))
    stamp('B_att')
    a('s_waitcnt vmcnt(20)')
    flag_check('initB', 'v244', S_DBG, NZERO_WG, 245)

A_F = [20, 36]
A_K, A_V, A_Q = 84, 116, 148
A_WO = 52
def a_xreg(ks, bb): return (ks * 4 + bb) * 4

def a_units(st):
    if st < 8: return [1, 2]
    return [0, 0]

def a_dma_w(st, vm):
    L = []
    slot = A_RING + (st % 5) * A_SLOT
    cb = lambda t='W%d' % st: vm.issue(t)
    for u, seg in enumerate(a_units(st)):
        L.append(('s_add_u32 m0, s71, 0x%x\nbuffer_load_dwordx4 v7, %s, s64 offen offset:%d lds' %
                  (slot + u * 8192 - seg * 1024, srd(SRD_W), seg * 1024), cb))
        t = 'buffer_load_dwordx4 v8, %s, s64 offen offset:%d lds' % (srd(SRD_W), (seg + 1) * 1024)
        if st >= 8 or u == 1: t += '\n' + adv_w(64)
        L.append((t, cb))
    return L

def a_dma_x(c, vm):
    cb = lambda t='x%d' % c: vm.issue(t)
    L = [('s_add_u32 m0, s72, 0x%x\nbuffer_load_dwordx4 v2, %s, s65 offen lds' % ((c % 4) * 16384, srd(SRD_X)), cb)]
    for i in range(1, 4):
        t = 'buffer_load_dwordx4 v%d, %s, s65 offen offset:%d lds' % (2 + i, srd(SRD_X), i * 1024)
        if i == 3: t += '\n' + adv_x(65)
        L.append((t, cb))
    return L

def a_xreads(c):
    L = []
    for kk in range(2):
        for bb in range(4):
            L.append('ds_read_b128 %s, v%d offset:%d' % (ar(a_xreg(2 * c + kk, bb), 4), 14 + kk, (c % 4) * 16384 + bb * 2048))
    return L

def a_reads(F, st, step):
    L = []
    sl = st % 5
    slot = A_RING + sl * A_SLOT
    for f in range(4):
        hh = f & 1; hi = f >> 1
        if st < 8: u, kk = hi, step
        else: u, kk = step, hi
        for jj in range(2):
            off = slot + u * 8192 + kk * 4096 + jj * 512
            if sl >= 3: v = 12 + hh; imm = off - 49152
            else: v = 10 + hh; imm = off
            assert 0 <= imm < 65536
            L.append('ds_read_b64_tr_b16 %s, v%d offset:%d' % (vr(F + 4 * f + 2 * jj, 2), v, imm))
    return L

def a_mfmas(F, st, step):
    L = []
    for f in range(4):
        hh = f & 1; hi = f >> 1
        for bb in range(4):
            w = vr(F + 4 * f, 4)
            if st < 8:
                ks = 2 * st + step
                x = ar(a_xreg(ks, bb), 4)
                acc = (A_K if hi == 0 else A_V) + (bb * 2 + hh) * 4
                first = (st == 0 and step == 0)
                c = (vr(A_EPS, 4) if hi == 0 else '0') if first else vr(acc, 4)
                L.append('v_mfma_f32_16x16x32_bf16 %s, %s, %s, %s' % (vr(acc, 4), x, w, c))
            else:
                cc = 2 * (st - 8) + step
                ks = 2 * cc + hi
                x = ar(a_xreg(ks, bb), 4)
                acc = A_Q + (bb * 2 + hh) * 4
                first = (st == 8 and step == 0 and hi == 0)
                c = vr(A_EPS, 4) if first else vr(acc, 4)
                L.append('v_mfma_f32_16x16x32_bf16 %s, %s, %s, %s' % (vr(acc, 4), w, x, c))
    return L
A_EPS = 56

def phi4(r, cm, tmp):
    L = []
    for q in range(2):
        L.append('v_pk_fma_f32 %s, %s, s[54:55], %s' % (vr(tmp + 2 * q, 2), vr(r + 2 * q, 2), vr(cm, 2)))
    for q in range(4):
        L.append('v_exp_f32_e64 v%d, v%d clamp' % (tmp + q, tmp + q))
    for q in range(4):
        L.append('v_max_f32 v%d, s58, v%d' % (r + q, r + q))
    for q in range(2):
        L.append('v_pk_add_f32 %s, %s, %s' % (vr(r + 2 * q, 2), vr(r + 2 * q, 2), vr(tmp + 2 * q, 2)))
    return L

def phi_consts(cm):
    a('s_mov_b32 s54, 0x%x' % fbits(LOG2E)); a('s_mov_b32 s55, s54')
    a('s_mov_b32 s58, 0x%x' % fbits(1e-6))
    a('v_mov_b32 v%d, 0x%x' % (cm, fbits(-1e-6 * LOG2E))); a('v_mov_b32 v%d, 0x%x' % (cm + 1, fbits(-1e-6 * LOG2E)))

def a_path():
    vm = VM()
    make_srd(SRD_X, S_AX, 2048 * 1024)
    make_srd(SRD_W, S_AW, 512 * 3072)
    a('s_lshl_b32 s71, s29, 11')
    a('s_lshl_b32 s72, s29, 12'); a('s_add_u32 s72, s72, 0x%x' % WO_BASE)
    rot_off('s57')
    a('s_lshl_b32 s65, s57, 7'); a('s_mul_i32 s64, s57, 0x30000')
    a('s_lshl_b32 s52, s27, 7'); a('s_lshl_b32 s53, s29, 5'); a('s_add_u32 s52, s52, s53')
    a('v_add_u32 v2, s52, v16')
    a('v_lshlrev_b32 v2, 10, v2')
    a('v_xor_b32 v19, v20, v18')
    a('v_lshl_add_u32 v2, v19, 4, v2')
    a('v_xor_b32 v3, 64, v2')
    a('v_add_u32 v4, %d, v2' % (16384 - 2048))
    a('v_add_u32 v5, %d, v3' % (24576 - 3072))
    a('v_add_u32 v3, %d, v3' % (8192 - 1024))
    for it in a_dma_x(0, vm) + a_dma_w(0, vm): em(it)
    dm = []
    for st in range(1, 3): dm += a_dma_x(st, vm) + a_dma_w(st, vm)
    npre = OPT['apre']
    for st in range(3, npre): dm += a_dma_w(st, vm)
    setup = wfrag_base_items()
    setup += ['s_and_b32 s62, s29, 1\ns_lshl_b32 s62, s62, 6', 'v_xor_b32 v10, s62, v9', 'v_xor_b32 v11, 32, v10',
              'v_add_u32 v12, 49152, v10', 'v_add_u32 v13, 49152, v11']
    setup += ['v_and_b32 v21, 15, v1', 'v_lshlrev_b32 v14, 7, v21', 'v_bfe_u32 v22, v1, 1, 3', 'v_xor_b32 v22, v22, v18',
              'v_lshl_add_u32 v14, v22, 4, v14',
              's_lshr_b32 s62, s29, 1\ns_lshl_b32 s62, s62, 13\ns_add_u32 s62, s62, 0x%x' % WO_BASE,
              'v_add_u32 v14, s62, v14', 'v_xor_b32 v15, 64, v14']
    setup += ['v_mov_b32 v%d, 0x%x' % (A_EPS + q, fbits(1e-6)) for q in range(4)]
    setup += wo_voff_items(A_WO, 180, 62)
    step = len(setup) / float(len(dm) + 1)
    weave(setup, [(dm, 1, step)])
    make_srd(SRD_O, S_AO, 512 * 1024)
    stamp('A_issued')
    zero_signal(len(vm.q))
    vm.wait('W0')
    a('s_barrier')
    stamp('A_first')
    for it in a_xreads(0) + a_reads(A_F[0], 0, 0): a(it)
    a('s_waitcnt lgkmcnt(0)')
    nextW = npre
    for st in range(12):
        d0 = []; d1 = []
        if st + 3 <= 7: d0 += a_dma_x(st + 3, vm)
        if nextW <= 11 and nextW - 5 < st:
            d0 += a_dma_w(nextW, vm); nextW += 1
        if st == 5: d0 += [(init_load(244, 245), lambda: vm.issue('init'))]
        if st >= 8:
            d0 += [(x, lambda: vm.issue('wo')) for x in wo_group(st - 8, A_WO)]
        late = nextW <= 11 and nextW - 5 <= st
        weave(a_mfmas(A_F[0], st, 0), [(a_reads(A_F[1], st, 1), 0, 1), (d0, 1, 15.0 / max(len(d0), 1) if len(d0) > 4 else 4)])
        a('s_waitcnt lgkmcnt(0)')
        if st + 1 <= 11: vm.wait_all_of(['W%d' % (st + 1), 'x%d' % (st + 1)])
        if st == 10: vm.wait('atom')
        a('s_barrier')
        stamp('stA%d' % st) if st < 8 else None
        if st == 10:
            a('s_cmp_eq_u32 s29, 0')
            a('s_cbranch_scc0 L_A_nosig16')
            a('s_lshl_b32 s52, s28, 8')
            a('v_mov_b32 v180, s52'); a('v_mov_b32 v181, 1')
            a('s_mov_b64 exec, 1')
            a('global_atomic_add v180, v181, s[%d:%d] sc1' % (S_WS, S_WS + 1))
            a('s_mov_b64 exec, -1')
            a.label('L_A_nosig16')
        if late:
            d1 = a_dma_w(nextW, vm); nextW += 1
        if st == 11 and OPT['asyncpoll']:
            d1 = [('s_lshl_b32 s52, s28, 8\nv_mov_b32 v182, s52\nglobal_load_dword v183, v182, s[%d:%d] sc1' % (S_WS, S_WS + 1), lambda: vm.issue('poll'))]
        rd = []
        if st + 1 <= 7: rd += a_xreads(st + 1)
        if st + 1 <= 11: rd += a_reads(A_F[0], st + 1, 0)
        weave(a_mfmas(A_F[1], st, 1), [(rd, 0, 1), (d1, 1, 4)])
        a('s_waitcnt lgkmcnt(0)')
        if st == 7:
            stamp('A_pass1')
            a_epi_k(vm)
            stamp('A_epik')
    stamp('A_pass2')
    a_epi_q(vm)
    a('s_lshl_b32 s52, s30, 7'); a('s_lshl_b32 s53, s29, 5'); a('s_add_u32 s52, s52, s53')
    a('s_lshl_b32 s74, s52, 11')
    a('s_mov_b32 s75, 11')
    publish_signal(0)
    a('s_branch L_P2')

def a_epi_k(vm):
    KP, VP = 184, 200
    TMP = 216; CM = 220; ONES = 224; KVR = 228; ZR = 246
    phi_consts(CM)
    for q in range(4): a('v_mov_b32 v%d, 0x3f803f80' % (ONES + q))
    for hh in range(2):
        for bb in range(4):
            r = A_K + (bb * 2 + hh) * 4
            t = TMP if (bb & 1) == 0 else 228
            for it in phi4(r, CM, t): a(it)
            a('v_cvt_pk_bf16_f32 v%d, v%d, v%d' % (KP + 8 * hh + 2 * bb, r, r + 1))
            a('v_cvt_pk_bf16_f32 v%d, v%d, v%d' % (KP + 8 * hh + 2 * bb + 1, r + 2, r + 3))
            r = A_V + (bb * 2 + hh) * 4
            a('v_cvt_pk_bf16_f32 v%d, v%d, v%d' % (VP + 8 * hh + 2 * bb, r, r + 1))
            a('v_cvt_pk_bf16_f32 v%d, v%d, v%d' % (VP + 8 * hh + 2 * bb + 1, r + 2, r + 3))
            if bb & 1:
                o = 4 * (bb >> 1)
                ckv = vr(A_V + 4 * hh, 4) if bb == 3 else '0'; cz = vr(A_K + 4 * hh, 4) if bb == 3 else '0'
                a('v_mfma_f32_16x16x32_bf16 %s, %s, %s, %s' % (vr(A_V + 4 * hh, 4), vr(VP + 8 * hh + o, 4), vr(KP + 8 * hh + o, 4), ckv))
                a('v_mfma_f32_16x16x32_bf16 %s, %s, %s, %s' % (vr(A_K + 4 * hh, 4), vr(ONES, 4), vr(KP + 8 * hh + o, 4), cz))
    a('s_lshr_b32 s52, s29, 1'); a('s_lshl_b32 s52, s52, 2'); a('s_and_b32 s53, s29, 1'); a('s_lshl_b32 s53, s53, 1'); a('s_add_u32 s52, s52, s53')
    a('v_lshlrev_b32 v%d, 4, v1' % TMP)
    a('s_lshl_b32 s53, s52, 10'); a('s_add_u32 s53, s53, %d' % A_SCR)
    a('v_add_u32 v%d, s53, v%d' % (TMP + 1, TMP))
    a('v_lshlrev_b32 v%d, 2, v1' % (TMP + 2))
    a('s_lshl_b32 s53, s52, 8'); a('s_add_u32 s53, s53, %d' % A_ZSCR)
    a('v_add_u32 v%d, s53, v%d' % (TMP + 3, TMP + 2))
    for hh in range(2):
        a('ds_write_b128 v%d, %s offset:%d' % (TMP + 1, vr(A_V + 4 * hh, 4), hh * 1024))
        a('ds_write_b32 v%d, v%d offset:%d' % (TMP + 3, A_K + 4 * hh, hh * 256))
    a('s_lshl_b32 s52, s29, 10'); a('s_add_u32 s52, s52, %d' % A_SCR)
    a('v_add_u32 v%d, s52, v%d' % (TMP, TMP))
    a('s_lshl_b32 s52, s29, 8'); a('s_add_u32 s52, s52, %d' % A_ZSCR)
    a('v_add_u32 v%d, s52, v%d' % (TMP + 2, TMP + 2))
    a('s_waitcnt lgkmcnt(0)')
    a('s_barrier')
    for rh in range(2):
        a('ds_read_b128 %s, v%d offset:%d' % (vr(KVR + 4 * rh, 4), TMP, rh * 4096))
        a('ds_read_b32 v%d, v%d offset:%d' % (ZR + rh, TMP + 2, rh * 1024))
    vm.wait('init')
    flag_check('initA', 'v244', S_DBG, NZERO_WG, 245)
    a('v_and_b32 v%d, 15, v1' % TMP); a('v_lshlrev_b32 v%d, 2, v%d' % (TMP, TMP))
    a('v_lshrrev_b32 v%d, 4, v1' % (TMP + 1))
    a('v_lshl_add_u32 v%d, v%d, 8, v%d' % (TMP + 1, TMP + 1, TMP))
    a('s_lshl_b32 s52, s28, 2'); a('s_add_u32 s52, s52, s29'); a('s_mul_i32 s52, s52, %d' % KVS); a('s_add_u32 s52, s52, 0x%x' % KV)
    a('s_waitcnt lgkmcnt(0)')
    for q in range(4):
        a('v_add_f32 v%d, v%d, v%d' % (KVR + q, KVR + q, KVR + 4 + q))
    a('v_add_f32 v%d, v%d, v%d' % (ZR, ZR, ZR + 1))
    for q in range(4):
        a('buffer_atomic_add_f32 v%d, v%d, %s, s52 offen offset:%d' % (KVR + q, TMP + 1, srd(SRD_WS), q * 64)); vm.issue('atom')
    a('s_mov_b64 exec, 0xffff')
    a('buffer_atomic_add_f32 v%d, v%d, %s, s52 offen offset:1024' % (ZR, TMP, srd(SRD_WS))); vm.issue('atom')
    a('s_mov_b64 exec, -1')

def a_epi_q(vm):
    QP = 20; TMP = 216; CM = 220; KZ = 36; AOP = 68; D1 = 84; OP = 184
    def kv_dma():
        a('v_lshlrev_b32 v18, 4, v1')
        a('s_lshl_b32 s52, s28, 2'); a('s_mul_i32 s52, s52, %d' % KVS); a('s_add_u32 s52, s52, 0x%x' % KV)
        for h in range(4):
            a('s_mov_b32 m0, %d' % (A_KVL + h * KVS))
            a('buffer_load_dwordx4 v18, %s, s52 offen sc1 lds' % srd(SRD_WS))
            a('s_mov_b64 exec, 0xf')
            a('s_add_u32 s53, s52, 1024')
            a('s_mov_b32 m0, %d' % (A_KVL + h * KVS + 1024))
            a('buffer_load_dwordx4 v18, %s, s53 offen sc1 lds' % srd(SRD_WS))
            a('s_mov_b64 exec, -1')
            if h < 3: a('s_add_u32 s52, s52, %d' % KVS)
    a('s_cmp_eq_u32 s29, 0')
    a('s_cbranch_scc0 L_A_nopoll')
    if OPT['asyncpoll']:
        vm.wait('poll')
        flag_check('cnt16', 'v182', S_WS, 16, 183)
    else:
        a('s_lshl_b32 s54, s28, 8')
        a('v_mov_b32 v182, s54')
        spin_wait('v182', S_WS, 16, 'cnt16', 183)
    kv_dma()
    a.label('L_A_nopoll')
    stamp('A_sync16')
    phi_consts(CM)
    for pr in range(2):
        for hh in range(2):
            q0 = QP + (pr * 2 + hh) * 4
            for b in range(2):
                r = A_Q + ((2 * pr + b) * 2 + hh) * 4
                t = TMP if b == 0 else 228
                for it in phi4(r, CM, t): a(it)
                a('v_cvt_pk_bf16_f32 v%d, v%d, v%d' % (q0 + 2 * b, r, r + 1))
                a('v_cvt_pk_bf16_f32 v%d, v%d, v%d' % (q0 + 2 * b + 1, r + 2, r + 3))
            a('v_permlane16_swap_b32 v%d, v%d' % (q0, q0 + 2))
            a('v_permlane16_swap_b32 v%d, v%d' % (q0 + 1, q0 + 3))
    a('v_and_b32 v16, 3, v1')
    a('v_bfe_u32 v17, v1, 3, 1')
    a('v_lshl_add_u32 v16, v17, 2, v16')
    a('v_bfe_u32 v17, v1, 2, 1')
    a('v_lshl_add_u32 v16, v17, 3, v16')
    a('v_bfe_u32 v17, v1, 4, 1')
    a('v_cmp_eq_u32 vcc, 1, v17')
    a('v_cndmask_b32_e64 v16, v16, 16, vcc')
    a('v_lshlrev_b32 v16, 6, v16')
    a('v_lshrrev_b32 v17, 5, v1')
    a('v_lshl_add_u32 v19, v17, 5, v16')
    a('s_and_b32 s52, s29, 1'); a('s_mul_i32 s53, s52, %d' % (2 * KVS)); a('s_add_u32 s53, s53, %d' % A_KVL)
    a('v_add_u32 v19, s53, v19')
    a('s_lshl_b32 s53, s28, 2'); a('s_lshl_b32 s52, s52, 1'); a('s_add_u32 s52, s52, s53'); a('s_lshl_b32 s52, s52, 10')
    a('v_lshlrev_b32 v16, 4, v1'); a('v_add_u32 v16, s52, v16')
    a('s_lshl_b32 s53, s27, 17'); a('s_lshr_b32 s54, s29, 1'); a('s_lshl_b32 s54, s54, 16'); a('s_add_u32 s53, s53, s54'); a('s_add_u32 s53, s53, 0x%x' % CH)
    stamp('A_epiq')
    a('s_waitcnt vmcnt(0)')
    a('s_barrier')
    for hh in range(2):
        a('ds_read_b128 %s, v19 offset:%d' % (vr(KZ + 8 * hh, 4), hh * KVS))
        a('ds_read_b128 %s, v19 offset:%d' % (vr(KZ + 8 * hh + 4, 4), hh * KVS + 16))
    for hh in range(2):
        a('s_waitcnt lgkmcnt(%d)' % (2 - 2 * hh))
        for q in range(4):
            a('v_cvt_pk_bf16_f32 v%d, v%d, v%d' % (AOP + 4 * hh + q, KZ + 8 * hh + 2 * q, KZ + 8 * hh + 2 * q + 1))
        for pr in range(2):
            a('v_mfma_f32_32x32x16_bf16 %s, %s, %s, 0' % (vr(D1 + 16 * (pr * 2 + hh), 16), vr(AOP + 4 * hh, 4), vr(QP + 4 * (pr * 2 + hh), 4)))
    a('s_mov_b32 s58, 0x%x' % fbits(1e-6))
    for hh in range(2):
        for pr in range(2):
            i = pr * 2 + hh
            d = D1 + 16 * i
            a('v_add_f32 v%d, s58, v%d' % (d + 8, d + 8))
            a('v_rcp_f32 v%d, v%d' % (d + 8, d + 8))
            for q in range(4):
                a('v_pk_mul_f32 %s, %s, %s op_sel_hi:[1,0]' % (vr(d + 2 * q, 2), vr(d + 2 * q, 2), vr(d + 8, 2)))
            for q in range(4):
                a('v_cvt_pk_bf16_f32 v%d, v%d, v%d' % (OP + 4 * i + q, d + 2 * q, d + 2 * q + 1))
            if pr == 1 and hh == 0: pass
            a('s_add_u32 s54, s53, %d' % (pr * 32768))
            a('buffer_store_dwordx4 %s, v16, %s, s54 offen offset:%d sc1' % (vr(OP + 4 * i, 4), srd(SRD_WS), hh * 1024))
    stamp('A_o')

def phase2():
    a.label('L_P2')
    make_srd(SRD_OUT, S_OUT, 2048 * 2048)
    a('s_lshl_b32 s52, s26, 4'); a('s_add_u32 s52, s52, s30'); a('s_lshl_b32 s52, s52, 2'); a('s_add_u32 s52, s52, s29')
    a('s_lshl_b32 s52, s52, 15'); a('s_add_u32 s52, s52, 0x%x' % CH)
    a('v_lshlrev_b32 v2, 4, v1')
    a('v_lshrrev_b32 v3, 5, v1')
    a('v_lshlrev_b32 v3, 10, v3')
    a('v_bfe_u32 v4, v1, 2, 2')
    a('v_lshl_add_u32 v3, v4, 7, v3')
    a('v_bfe_u32 v4, v1, 4, 1')
    a('v_lshl_add_u32 v3, v4, 5, v3')
    a('v_and_b32 v4, 3, v1')
    a('v_lshl_add_u32 v3, v4, 3, v3')
    a('v_bfe_u32 v4, v1, 3, 1')
    a('v_lshlrev_b32 v4, 6, v4')
    a('v_xor_b32 v3, v3, v4')
    a('v_add_u32 v3, %d, v3' % WO_BASE)
    a('v_xor_b32 v4, 64, v3')
    WF = [20, 28, 36]; ACC = 48
    def reads(h, F):
        return ['ds_read_b64_tr_b16 %s, v%d offset:%d' % (vr(F + 4 * tl + 2 * jj, 2), 3 + tl, h * 2048 + jj * 512)
                for tl in range(2) for jj in range(2)]
    for it in reads(0, WF[0]) + reads(1, WF[1]): a(it)
    a('s_barrier')
    stamp('P2_go')
    def load(h):
        t = ''
        if h % 4 == 0 and h: t = 's_add_u32 s52, s52, 4096\n'
        return t + 'buffer_load_dwordx4 %s, v2, %s, s52 offen offset:%d sc1' % (ar(4 * h, 4), srd(SRD_WS), (h % 4) * 1024)
    PRE = OPT['p2pre']
    for h in range(PRE): a(load(h))
    issued = PRE
    for h in range(32):
        F = WF[h % 3]
        nxt = reads(h + 2, WF[(h + 2) % 3]) if h + 2 < 32 else []
        for it in nxt: a(it)
        outstanding = (8 if h + 2 < 32 else (4 if h + 1 < 32 else 0))
        a('s_waitcnt vmcnt(%d) lgkmcnt(%d)' % (issued - 1 - h, outstanding))
        for tl in range(2):
            c = vr(ACC + 16 * tl, 16) if h else '0'
            a('v_mfma_f32_32x32x16_bf16 %s, %s, %s, %s' % (vr(ACC + 16 * tl, 16), vr(F + 4 * tl, 4), ar(4 * h, 4), c))
            if tl == 0 and issued < 32:
                a(load(issued)); issued += 1
    stamp('P2_gemm')
    PK = 84
    a('v_and_b32 v5, 31, v1')
    a('v_and_b32 v6, 7, v5')
    a('v_lshlrev_b32 v7, 7, v5')
    a('s_lshl_b32 s52, s29, 12')
    a('v_add_u32 v7, s52, v7')
    a('v_lshrrev_b32 v8, 5, v1')
    a('v_lshl_add_u32 v7, v8, 3, v7')
    for g in range(8):
        a('v_xor_b32 v9, %d, v6' % g)
        a('v_lshl_add_u32 v%d, v9, 4, v7' % (116 + g))
    a('v_lshrrev_b32 v5, 3, v1')
    a('v_and_b32 v6, 7, v1')
    a('v_xor_b32 v8, v5, v6')
    a('v_lshlrev_b32 v8, 4, v8')
    a('v_lshl_add_u32 v8, v5, 7, v8')
    a('v_add_u32 v8, s52, v8')
    a('v_lshlrev_b32 v9, s75, v5')
    a('v_lshl_add_u32 v9, v6, 4, v9')
    a('s_lshl_b32 s53, s31, 7'); a('s_add_u32 s74, s74, s53')
    a('s_lshl_b32 s54, 8, s75')
    for tl in range(2):
        for q in range(4):
            d = ACC + 16 * tl + 4 * q; p = PK + 2 * (tl * 4 + q)
            a('v_cvt_pk_bf16_f32 v%d, v%d, v%d' % (p, d, d + 1))
            a('v_cvt_pk_bf16_f32 v%d, v%d, v%d' % (p + 1, d + 2, d + 3))
            a('ds_write_b64 v%d, %s' % (116 + tl * 4 + q, vr(p, 2)))
    a('s_waitcnt lgkmcnt(0)')
    for it in range(4):
        a('ds_read_b128 %s, v8 offset:%d' % (vr(100 + 4 * it, 4), it * 1024))
    for it in range(4):
        a('s_waitcnt lgkmcnt(%d)' % (3 - it))
        a('buffer_store_dwordx4 %s, v9, %s, s74 offen' % (vr(100 + 4 * it, 4), srd(SRD_OUT)))
        if it < 3: a('s_add_u32 s74, s74, s54')
    if OPT['stamps']:
        a('s_waitcnt vmcnt(0)')
        stamp('end')
        a('s_waitcnt lgkmcnt(0)')
        a('s_lshl_b32 s52, s2, 2'); a('s_add_u32 s52, s52, s29'); a('s_lshl_b32 s52, s52, 7'); a('s_add_u32 s52, s52, 0x%x' % STAMP)
        a('v_lshlrev_b32 v2, 2, v1')
        a('v_mov_b32 v3, 0')
        for i in range(13):
            a('v_cmp_eq_u32 vcc, %d, v1' % i)
            a('v_mov_b32 v4, s%d' % (76 + 2 * i))
            a('v_cndmask_b32 v3, v3, v4, vcc')
        a('s_mov_b64 exec, 0x1fff')
        a('buffer_store_dword v3, v2, %s, s52 offen' % srd(SRD_WS))
    a('s_endpgm')

hdr = open('concat_heads__linear_attn_block__sliding_local_dilated__prompt.s.ref').read().split('\n')
for l in hdr:
    if l.startswith('; @launch'): break
    a(l)
if OPT['empty2']:
    a('; @launch kernel=%s grid=(256,1,1) block=(256,1,1) lds=%d' % (KNAME, LDS_BYTES))
    for i in range(OPT['empty2']):
        a('; @launch kernel=empty_kernel grid=(256,1,1) block=(256,1,1) lds=0')
else:
    a('; @launch grid=(256,1,1) block=(256,1,1) lds=%d' % LDS_BYTES)
a('.amdgcn_target "amdgcn-amd-amdhsa--gfx950"')
kernel_begin(a, KNAME)
body_start = len(a.lines)
prologue()
base = NSTAMP[0]
a_path()
NSTAMP[0] = base
b_path()
NSTAMP[0] = 10
phase2()
body = fix_hazards(a.lines[body_start:], verbose=True)
a.lines = a.lines[:body_start] + body
if OPT['empty2']:
    kernel_begin(a, 'empty_kernel')
    a('s_endpgm')
kernel_desc(a, KNAME, 512, 102, 256)
if OPT['empty2']:
    kernel_desc(a, 'empty_kernel', 64, 32)
open(OPT['out'], 'w').write(a.text())
print('lines', len(a.lines))
```

```python
import sys, struct
from asmlib import *

KNAME = 'concat_heads__linear_attn_block__sliding_local_dilated__prompt_kernel'
OPT = dict(stamps=0, ststamps=0, out='k.s', spin=1 << 20, empty2=0, p2pre=8,
           rot=9, map84=0, bpeel=1, bstep=4, wo_early=1, acap=2, probe0=0, probe1=0, rt=0, delay=0, apre=5, asyncpoll=1)
for arg in sys.argv[1:]:
    k, v = arg.split('=')
    OPT[k] = int(v, 0) if k not in ('out',) else v

def fbits(x): return struct.unpack('<I', struct.pack('<f', x))[0]
LOG2E = 1.4426950408889634
NEG = -1.0e30

CNT16 = 0x0000; CNT8 = 0x1000; KV = 0x4000; KVS = 1280; CH = 0x100000; STAMP = 0x600000
WS_SIZE = 0x800000
NZERO_WG = 16
WO_BASE = 98304
B_SLOT = 43008
A_SLOT = 16384
A_RING = 4096
A_SCR = 86016
A_ZSCR = 94208
A_KVL = 8192
LDS_BYTES = 163840

S_AX, S_AW, S_AO, S_BX, S_BW, S_BO, S_OUT, S_DBG, S_WS = 8, 10, 12, 14, 16, 18, 20, 22, 24
SRD_X, SRD_W, SRD_O, SRD_WS, SRD_OUT = 32, 36, 40, 44, 48
def srd(r): return 's[%d:%d]' % (r, r + 3)
def vr(r, n=1): return 'v%d' % r if n == 1 else 'v[%d:%d]' % (r, r + n - 1)
def ar(r, n=1): return 'a%d' % r if n == 1 else 'a[%d:%d]' % (r, r + n - 1)

a = Asm()
NSTAMP = [0]
def stamp(name):
    if not OPT['stamps']: return
    isst = name.startswith('st') and name != 'start'
    if OPT['ststamps']:
        if not (name in ('start', 'A_first', 'B_first', 'end') or isst): return
        if name == 'end': NSTAMP[0] = 12
    elif isst: return
    i = NSTAMP[0]; NSTAMP[0] += 1
    assert i < 13
    a('%s s[%d:%d]   ; stamp %s' % ('s_memrealtime' if OPT['rt'] else 's_memtime', 76 + 2 * i, 77 + 2 * i, name))

class VM:
    def __init__(self): self.q = []
    def issue(self, tag, n=1): self.q += [tag] * n
    def count_after(self, tag):
        if tag not in self.q: return None
        idx = max(i for i, t in enumerate(self.q) if t == tag)
        return len(self.q) - 1 - idx
    def wait(self, tag):
        n = self.count_after(tag)
        if n is None: return
        assert n <= 63
        a('s_waitcnt vmcnt(%d)   ; %s' % (n, tag))
        self.q = self.q[len(self.q) - n:] if n else []
    def wait_all_of(self, tags):
        ns = [(self.count_after(t), t) for t in tags if self.count_after(t) is not None]
        if ns: self.wait(min(ns)[1])

def make_srd(r, sp, size):
    a('s_mov_b32 s%d, s%d' % (r, sp)); a('s_mov_b32 s%d, s%d' % (r + 1, sp + 1))
    a('s_mov_b32 s%d, 0x%x' % (r + 2, size)); a('s_mov_b32 s%d, 0x20000' % (r + 3))

def srd_const(r, size):
    a('s_mov_b32 s%d, 0x%x' % (r + 2, size)); a('s_mov_b32 s%d, 0x20000' % (r + 3))
def srd_base(r, sp):
    a('s_mov_b32 s%d, s%d' % (r, sp)); a('s_mov_b32 s%d, s%d' % (r + 1, sp + 1))

def em(it):
    if isinstance(it, tuple):
        a(it[0]); it[1]()
    else: a(it)

def weave(main, streams):
    slots = [[] for _ in main]; tail = []
    for items, first, step in streams:
        for k, it in enumerate(items):
            pos = int(first + k * step)
            (slots[pos] if pos < len(main) else tail).append(it)
    for m, sl in zip(main, slots):
        em(m)
        for it in sl: em(it)
    for it in tail: em(it)

def spin_wait(vaddr, base, cmp_lit, name, vd):
    L = 'L_spin_' + name; D = 'L_spun_' + name
    a('s_mov_b32 s56, 0')
    a.label(L)
    a('global_load_dword v%d, %s, s[%d:%d] sc1' % (vd, vaddr, base, base + 1))
    a('s_waitcnt vmcnt(0)')
    a('v_readfirstlane_b32 s57, v%d' % vd)
    a('s_add_u32 s56, s56, 1')
    a('s_cmp_ge_u32 s56, 0x%x' % OPT['spin'])
    a('s_cbranch_scc1 %s' % D)
    a('s_cmp_lt_u32 s57, %d' % cmp_lit)
    a('s_cbranch_scc1 %s' % L)
    a.label(D)

def flag_check(name, vaddr, base, lit, vd):
    a('v_readfirstlane_b32 s57, v%d' % vd)
    a('s_cmp_ge_u32 s57, %d' % lit)
    a('s_cbranch_scc1 L_ok_%s' % name)
    spin_wait(vaddr, base, lit, name, vd)
    a.label('L_ok_%s' % name)

def init_load(vz, vd):
    return 'v_mov_b32 v%d, 0\nglobal_load_dword v%d, v%d, s[%d:%d] sc1' % (vz, vd, vz, S_DBG, S_DBG + 1)

def rot_off(dst):
    m = OPT['rot']
    if m == 0: a('s_mov_b32 %s, 0' % dst)
    elif m == 1:
        a('s_and_b32 %s, s2, 3' % dst); a('s_lshl_b32 %s, %s, 1' % (dst, dst))
    elif m == 2:
        a('s_xor_b32 %s, s27, s28' % dst); a('s_and_b32 %s, %s, 1' % (dst, dst)); a('s_lshl_b32 %s, %s, 2' % (dst, dst))
    elif m == 3:
        a('s_and_b32 %s, s2, 3' % dst)
    elif m == 5:
        a('s_add_u32 %s, s27, s28' % dst); a('s_and_b32 %s, %s, 3' % (dst, dst)); a('s_lshl_b32 %s, %s, 1' % (dst, dst))
    elif m == 6:
        a('s_add_u32 %s, s27, s28' % dst); a('s_and_b32 s56, s2, 3'); a('s_add_u32 %s, %s, s56' % (dst, dst))
        a('s_and_b32 %s, %s, 3' % (dst, dst)); a('s_lshl_b32 %s, %s, 1' % (dst, dst))
    elif m == 7:
        a('s_lshl_b32 %s, s27, 1' % dst); a('s_add_u32 %s, %s, s28' % (dst, dst)); a('s_and_b32 %s, %s, 7' % (dst, dst))
    elif m == 8:
        a('s_lshl_b32 %s, s27, 1' % dst); a('s_add_u32 %s, %s, s28' % (dst, dst)); a('s_and_b32 s56, s2, 3'); a('s_lshl_b32 s56, s56, 1')
        a('s_add_u32 %s, %s, s56' % (dst, dst)); a('s_and_b32 %s, %s, 7' % (dst, dst))
    elif m == 9:
        a('s_xor_b32 %s, s27, s28' % dst); a('s_and_b32 %s, %s, 1' % (dst, dst)); a('s_lshl_b32 %s, %s, 2' % (dst, dst))
        a('s_and_b32 s56, s2, 3'); a('s_add_u32 %s, %s, s56' % (dst, dst)); a('s_and_b32 %s, %s, 7' % (dst, dst))
    elif m == 4:
        a('s_and_b32 %s, s2, 1' % dst); a('s_lshl_b32 %s, %s, 2' % (dst, dst))

def adv_w(r): return 's_add_u32 s%d, s%d, 0x30000\ns_cmp_eq_u32 s%d, 0x180000\ns_cselect_b32 s%d, 0, s%d' % (r, r, r, r, r)
def adv_x(r): return 's_add_u32 s%d, s%d, 128\ns_and_b32 s%d, s%d, 1023' % (r, r, r, r)

def prologue():
    a('s_cmp_ge_u32 s2, 256')
    a('s_cbranch_scc0 L_go')
    a('s_endpgm')
    a.label('L_go')
    a('s_load_dwordx16 s[8:23], s[0:1], 0')
    a('s_load_dwordx2 s[24:25], s[0:1], 64')
    stamp('start')
    if OPT['delay']:
        a('s_mov_b32 s52, %d' % OPT['delay'])
        a.label('L_delay')
        for i in range(8): a('v_mov_b32 v3, v3')
        a('s_sub_u32 s52, s52, 1')
        a('s_cmp_lg_u32 s52, 0')
        a('s_cbranch_scc1 L_delay')
    a('v_and_b32 v1, 63, v0')
    a('v_lshrrev_b32 v2, 6, v0')
    a('s_lshr_b32 s26, s2, 2')
    a('v_readfirstlane_b32 s29, v2')
    a('s_and_b32 s26, s26, 1')
    a('s_and_b32 s52, s2, 3')
    a('s_lshr_b32 s53, s2, 3')
    a('s_lshr_b32 s30, s53, 3')
    a('s_lshl_b32 s54, s52, 2')
    a('s_add_u32 s30, s30, s54')
    a('s_and_b32 s31, s53, 7')
    if OPT['map84']:
        a('s_and_b32 s54, s52, 1'); a('s_lshl_b32 s54, s54, 3'); a('s_lshr_b32 s27, s53, 2'); a('s_add_u32 s27, s27, s54')
        a('s_lshr_b32 s54, s52, 1'); a('s_lshl_b32 s54, s54, 2'); a('s_and_b32 s28, s53, 3'); a('s_add_u32 s28, s28, s54')
    else:
        a('s_mov_b32 s27, s30'); a('s_mov_b32 s28, s31')
    a('v_lshrrev_b32 v16, 3, v1')
    a('s_lshl_b32 s52, s29, 4')
    a('v_add_u32 v17, s52, v16')
    a('v_mul_u32_u24 v17, 3072, v17')
    a('v_lshrrev_b32 v18, 4, v1')
    a('v_and_b32 v19, 1, v18')
    a('v_lshlrev_b32 v19, 1, v19')
    a('v_and_b32 v20, 7, v1')
    a('v_xor_b32 v19, v19, v20')
    a('v_lshlrev_b32 v19, 4, v19')
    a('s_lshl_b32 s52, s28, 7')
    a('v_add3_u32 v7, v17, v19, s52')
    a('v_xor_b32 v8, 64, v7')
    a('v_add_u32 v8, %d, v8' % (8 * 3072 - 1024))
    a('s_cmp_eq_u32 s26, 0')
    a('s_cbranch_scc0 L_B')

def zero_init():
    make_srd(SRD_WS, S_WS, WS_SIZE)
    L = a.newlabel('L_nozero')
    a('s_cmp_ge_u32 s2, %d' % NZERO_WG)
    a('s_cbranch_scc1 %s' % L)
    a('v_mov_b32 v24, 0'); a('v_mov_b32 v25, 0'); a('v_mov_b32 v26, 0'); a('v_mov_b32 v27, 0')
    a('v_lshlrev_b32 v22, 4, v1')
    a('s_lshl_b32 s52, s2, 12')
    a('s_lshl_b32 s53, s29, 10')
    a('s_add_u32 s52, s52, s53')
    a('buffer_store_dwordx4 v[24:27], v22, %s, s52 offen sc1' % srd(SRD_WS))
    a.label(L)

def wfrag_base_items():
    return ['v_lshlrev_b32 v9, 10, v18', 'v_bfe_u32 v21, v1, 2, 2', 'v_lshl_add_u32 v9, v21, 7, v9',
            'v_and_b32 v21, 3, v1', 'v_lshl_add_u32 v9, v21, 3, v9', 'v_bfe_u32 v21, v1, 3, 2', 'v_lshl_add_u32 v9, v21, 5, v9']

def zero_signal(vm_after):
    L = a.newlabel('L_nosig')
    a('s_cmp_ge_u32 s2, %d' % NZERO_WG)
    a('s_cbranch_scc1 %s' % L)
    a('s_waitcnt vmcnt(%d)' % vm_after)
    a('s_barrier')
    a('s_cmp_eq_u32 s29, 0')
    a('s_cbranch_scc0 %s' % L)
    a('v_mov_b32 v244, 0'); a('v_mov_b32 v245, 1')
    a('s_mov_b64 exec, 1')
    a('global_atomic_add v244, v245, s[%d:%d] sc1' % (S_DBG, S_DBG + 1))
    a('s_mov_b64 exec, -1')
    a.label(L)

def wo_group(g, vwo):
    L = ['s_add_u32 m0, s70, 0x%x\ns_mov_b32 s59, 0x%x\nbuffer_load_dwordx4 v%d, %s, s59 offen lds' % (g * 4096, g * 32768, vwo, srd(SRD_O))]
    for q in range(1, 4):
        L.append('buffer_load_dwordx4 v%d, %s, s59 offen offset:%d lds' % (vwo + q, srd(SRD_O), q * 1024))
    return L

def wo_voff_items(vwo, vt, st):
    return ['v_lshrrev_b32 v%d, 3, v1' % vt,
            's_lshl_b32 s%d, s29, 7' % st,
            'v_add_u32 v%d, s%d, v%d' % (vt, st, vt),
            'v_lshlrev_b32 v%d, 10, v%d' % (vt, vt),
            'v_bfe_u32 v%d, v1, 4, 1' % (vt + 1),
            'v_lshlrev_b32 v%d, 2, v%d' % (vt + 1, vt + 1),
            'v_and_b32 v%d, 7, v1' % (vt + 2),
            'v_xor_b32 v%d, v%d, v%d' % (vt + 1, vt + 1, vt + 2),
            'v_lshlrev_b32 v%d, 4, v%d' % (vt + 1, vt + 1),
            's_lshl_b32 s%d, s31, 7' % st,
            'v_add3_u32 v%d, v%d, v%d, s%d' % (vwo, vt, vt + 1, st),
            'v_add_u32 v%d, %d, v%d' % (vwo + 1, 7168, vwo),
            'v_add_u32 v%d, %d, v%d' % (vwo + 2, 2 * 7168, vwo),
            'v_add_u32 v%d, %d, v%d' % (vwo + 3, 3 * 7168, vwo),
            's_lshl_b32 s70, s29, 14',
            's_add_u32 s70, s70, 0x%x' % WO_BASE]

def publish_signal(br):
    a('s_waitcnt vmcnt(0)')
    a('s_barrier')
    stamp('published')
    a('s_cmp_eq_u32 s29, 0')
    a('s_cbranch_scc0 L_pub_%d' % br)
    a('s_lshl_b32 s59, s27, 8'); a('s_add_u32 s59, s59, 0x%x' % (CNT8 + br * 16 * 256))
    a('s_lshl_b32 s58, s30, 8'); a('s_add_u32 s58, s58, 0x%x' % (CNT8 + br * 16 * 256))
    a('v_mov_b32 v16, s59'); a('v_mov_b32 v18, 1'); a('v_mov_b32 v19, s58')
    a('s_mov_b64 exec, 1')
    a('global_atomic_add v16, v18, s[%d:%d] sc1' % (S_WS, S_WS + 1))
    a('s_mov_b64 exec, -1')
    spin_wait('v19', S_WS, 8, 'cnt8_%d' % br, 17)
    a.label('L_pub_%d' % br)

B_F = [dict(x=20, w=56), dict(x=68, w=104)]
B_Q, B_K, B_V = 116, 148, 184
B_CPREV, B_CCUR, B_CH0, B_CH1, B_ONES, B_WO = 220, 224, 228, 232, 236, 240

def b_dma_w(base, lit=0):
    L = []
    for seg in (1, 2, 0):
        L.append('s_add_u32 m0, %s, 0x%x\nbuffer_load_dwordx4 v7, %s, s61 offen offset:%d lds' %
                 (base, lit + seg * 8192 - seg * 1024, srd(SRD_W), seg * 1024))
        L.append('buffer_load_dwordx4 v8, %s, s61 offen offset:%d lds' % (srd(SRD_W), (seg + 1) * 1024))
    L[-1] += '\n' + adv_w(61)
    return L
def b_dma_x(bx, bh, lit=0):
    L = ['s_add_u32 m0, %s, 0x%x\nbuffer_load_dwordx4 v2, %s, s60 offen lds' % (bx, lit, srd(SRD_X))]
    for ii in range(1, 4):
        L.append('buffer_load_dwordx4 v%d, %s, s60 offen offset:%d lds' % (2 + ii, srd(SRD_X), ii * 1024))
    L.append('s_add_u32 m0, %s, 0x%x\ns_mov_b64 exec, 0xffffffff\nbuffer_load_dwordx4 v6, %s, s60 offen lds\ns_mov_b64 exec, -1\n%s' %
             (bh, lit, srd(SRD_X), adv_x(60)))
    return L

def b_reads(F, vx, vw, kk):
    L = []
    for seg in range(3):
        for jj in range(2):
            L.append('ds_read_b64_tr_b16 %s, v%d offset:%d' % (vr(F['w'] + seg * 4 + jj * 2, 2), vw, seg * 8192 + kk * 4096 + jj * 512))
    for t in range(9):
        L.append('ds_read_b128 %s, v%d offset:%d' % (vr(F['x'] + 4 * t, 4), vx, t * 2048))
    return L

def b_mfmas(F, first=False):
    L = []
    c = lambda r: '0' if first else vr(r, 4)
    for t in range(9):
        x = vr(F['x'] + 4 * t, 4)
        if t < 8:
            L.append('v_mfma_f32_16x16x32_bf16 %s, %s, %s, %s' % (vr(B_Q + 4 * t, 4), vr(F['w'], 4), x, c(B_Q + 4 * t)))
        L.append('v_mfma_f32_16x16x32_bf16 %s, %s, %s, %s' % (vr(B_K + 4 * t, 4), vr(F['w'] + 4, 4), x, c(B_K + 4 * t)))
        L.append('v_mfma_f32_16x16x32_bf16 %s, %s, %s, %s' % (vr(B_V + 4 * t, 4), x, vr(F['w'] + 8, 4), c(B_V + 4 * t)))
    return L

def b_mask_items():
    I, G4, M, T1, T2, NG = 246, 247, 248, 249, 250, 251
    L = ['v_and_b32 v%d, 15, v1' % I, 's_mov_b32 s58, 0x%x' % fbits(NEG), 's_cmp_eq_u32 s27, 0\ns_cselect_b32 s57, s58, 0',
         'v_mov_b32 v%d, s58' % NG, 'v_lshlrev_b32 v%d, 2, v18' % G4]
    for r in range(4):
        L += ['v_add_u32 v%d, %d, v%d' % (M, r, G4), 'v_sub_u32 v%d, v%d, v%d' % (T1, M, I), 'v_sub_u32 v%d, v%d, v%d' % (T2, I, M),
              'v_cmp_le_i32 vcc, 9, v%d\ns_nop 1\nv_cndmask_b32_e64 v%d, v%d, 0, vcc' % (T1, B_CPREV + r, NG),
              'v_cmp_ge_u32 vcc, 7, v%d\ns_nop 1\nv_cndmask_b32_e64 v%d, v%d, 0, vcc' % (T2, B_CCUR + r, NG),
              'v_cmp_le_i32 vcc, 1, v%d\nv_cmp_ge_u32 s[54:55], 7, v%d' % (T1, M),
              's_and_b64 vcc, vcc, s[54:55]\nv_cndmask_b32_e64 v%d, v%d, 0, vcc' % (B_CH0 + r, NG),
              'v_min_f32 v%d, s57, v%d' % (B_CH0 + r, B_CH0 + r),
              'v_min_f32 v%d, s57, v%d' % (B_CH1 + r, B_CPREV + r),
              'v_mov_b32 v%d, 0x3f803f80' % (B_ONES + r)]
    return L

def b_stage(dma_x, dma_w, vmn, last=False, loop=None, extra0=(), extra1=(), valu0=(), valu1=(), first=False):
    misc0 = []
    if not last:
        misc0 += ['v_add_u32 v15, s65, v10', 'v_add_u32 v16, s65, v12']
    if dma_w: misc0 += ['s_add_u32 s69, s64, s73']
    dx = b_dma_x('s67', 's68') if dma_x else []
    pre = ['s_add_u32 s67, s66, s71\ns_add_u32 s68, s66, s72'] if dma_x else []
    d0 = list(extra0) + dx
    weave(b_mfmas(B_F[0], first), [(pre, 0, 1), (b_reads(B_F[1], 13, 14, 1), 0, 1), (d0, 1, 24.0 / max(len(d0), 1)), (misc0, 16, 2), (list(valu0), 1, 24.0 / max(len(valu0), 1))])
    a('s_waitcnt lgkmcnt(0)')
    if vmn is not None: a('s_waitcnt vmcnt(%d)' % vmn)
    a('s_barrier')
    if (not OPT['probe0'] or NSTAMP[0] < 11) and not OPT['probe1']: stamp('stB')
    rd = b_reads(B_F[0], 15, 16, 0) if not last else []
    dw = (b_dma_w('s69') if dma_w else []) + list(extra1)
    misc1 = []
    if not last:
        misc1 = ['v_add_u32 v13, s65, v11', 'v_mov_b32 v14, v16',
                 's_mov_b32 s53, s64\ns_mov_b32 s64, s65', 's_mov_b32 s65, s66\ns_mov_b32 s66, s53']
    if loop: misc1 += ['s_add_u32 s74, s74, 1\ns_cmp_lt_u32 s74, %d' % loop]
    weave(b_mfmas(B_F[1]), [(rd, 0, 1), (dw, 2, 4), (list(valu1), 1, 22.0 / max(len(valu1), 1)), (misc1, 23, 0)])
    if not last: a('s_waitcnt lgkmcnt(0)')

def b_path():
    a.label('L_B')
    srd_const(SRD_X, 2048 * 1024); srd_const(SRD_W, 512 * 3072)
    a('s_lshl_b32 s71, s29, 12')
    a('s_lshl_b32 s72, s29, 9'); a('s_add_u32 s72, s72, 16384')
    a('s_lshl_b32 s73, s29, 11'); a('s_add_u32 s73, s73, 18432')
    rot_off('s57')
    a('s_lshl_b32 s60, s57, 7'); a('s_mul_i32 s61, s57, 0x30000')
    a('s_lshl_b32 s52, s27, 7')
    a('s_and_b32 s53, s29, 1')
    a('s_lshr_b32 s54, s29, 1')
    a('s_lshl_b32 s55, s53, 6')
    a('s_add_u32 s55, s55, s54')
    a('s_add_u32 s55, s55, s52')
    a('s_lshl_b32 s55, s55, 10')
    a('v_lshlrev_b32 v17, 11, v16')
    a('v_xor_b32 v19, v20, v18')
    a('v_lshlrev_b32 v19, 4, v19')
    a('v_add3_u32 v2, v17, v19, s55')
    a('v_xor_b32 v3, 64, v2')
    a('v_add_u32 v4, %d, v2' % (32768 - 2048))
    a('v_add_u32 v5, %d, v3' % (49152 - 3072))
    a('v_add_u32 v3, %d, v3' % (16384 - 1024))
    a('s_lshl_b32 s55, s53, 3')
    a('s_add_u32 s55, s55, s54')
    a('s_add_u32 s55, s55, s52')
    a('s_sub_u32 s55, s55, 16')
    a('s_lshl_b32 s55, s55, 10')
    a('s_lshl_b32 s56, s29, 1')
    a('v_add_u32 v19, s56, v18')
    a('v_and_b32 v19, 7, v19')
    a('v_xor_b32 v19, v19, v20')
    a('v_lshlrev_b32 v19, 4, v19')
    a('v_add3_u32 v6, v17, v19, s55')
    a('s_waitcnt lgkmcnt(0)')
    srd_base(SRD_W, S_BW); srd_base(SRD_X, S_BX)
    if OPT['probe0']: stamp('stP0')
    for it in b_dma_w('s73', 0) + b_dma_x('s71', 's72', 0): a(it)
    zero_init()
    dm = b_dma_w('s73', B_SLOT) + b_dma_x('s71', 's72', B_SLOT)
    if not OPT['bpeel']: dm += b_dma_w('s73', 2 * B_SLOT)
    setup = []
    setup += wfrag_base_items()
    setup += ['v_and_b32 v21, 15, v1', 'v_lshlrev_b32 v10, 7, v21', 'v_bfe_u32 v22, v1, 1, 3', 'v_xor_b32 v22, v22, v18',
              'v_lshl_add_u32 v10, v22, 4, v10', 'v_xor_b32 v11, 64, v10',
              's_lshl_b32 s57, s29, 5', 'v_xor_b32 v12, s57, v9', 'v_add_u32 v12, 18432, v12']
    if not OPT['bpeel']:
        setup += ['v_mov_b32 v%d, 0' % r for r in range(B_Q, B_V + 36)]
    step = min(len(setup) / float(len(dm) + 1), OPT['bstep'])
    weave(setup, [(dm, 0, step)])
    make_srd(SRD_O, S_BO, 512 * 1024)
    stamp('B_issued')
    nafter = len(dm)
    zero_signal(nafter)
    a('s_mov_b32 s64, 0'); a('s_mov_b32 s65, %d' % B_SLOT); a('s_mov_b32 s66, %d' % (2 * B_SLOT))
    a('v_mov_b32 v13, v11'); a('v_mov_b32 v14, v12')
    a('s_mov_b32 s74, 0')
    a('s_waitcnt vmcnt(%d)' % nafter)
    a('s_barrier')
    stamp('B_first')
    for it in b_reads(B_F[0], 10, 12, 0): a(it)
    a('s_waitcnt lgkmcnt(0)')
    nloop = 5
    if OPT['bpeel']:
        b_stage(True, True, 11, extra0=b_dma_w('s73', 2 * B_SLOT), first=True); nloop = 4
    if OPT['ststamps']:
        for i in range(nloop): b_stage(True, True, 11)
    else:
        a.label('L_Bloop')
        b_stage(True, True, 11, loop=nloop)
        a('s_cbranch_scc1 L_Bloop')
    if OPT['wo_early']:
        g = [wo_group(k, B_WO) for k in range(4)]
        mk = b_mask_items()
        b_stage(True, False, 11, extra1=g[0], valu0=wo_voff_items(B_WO, 246, 52))
        b_stage(False, False, 8, extra0=g[1], extra1=g[2], valu0=mk[:23], valu1=mk[23:])
        b_stage(False, False, None, last=True, extra0=g[3])
    else:
        b_stage(True, False, 11)
        b_stage(False, False, 0)
        b_stage(False, False, None, last=True)
    stamp('B_gemm')
    b_attention()
    a('s_lshl_b32 s52, s30, 7')
    a('s_and_b32 s53, s29, 1'); a('s_lshl_b32 s53, s53, 6')
    a('s_lshr_b32 s54, s29, 1')
    a('s_add_u32 s52, s52, s53'); a('s_add_u32 s52, s52, s54')
    a('s_lshl_b32 s74, s52, 11'); a('s_add_u32 s74, s74, 1024')
    a('s_mov_b32 s75, 12')
    publish_signal(1)

def b_attention():
    QP, KP, LV = 20, 36, (54, 64)
    S = 116; MX = 180; T = 188; P = 74; OP = 20
    wo = []
    if not OPT['wo_early']:
        for g in range(4): wo += wo_group(g, B_WO)
    L = []
    for t in range(8):
        L.append('v_cvt_pk_bf16_f32 v%d, v%d, v%d' % (QP + 2 * t, B_Q + 4 * t, B_Q + 4 * t + 1))
        L.append('v_cvt_pk_bf16_f32 v%d, v%d, v%d' % (QP + 2 * t + 1, B_Q + 4 * t + 2, B_Q + 4 * t + 3))
    for t in range(9):
        L.append('v_cvt_pk_bf16_f32 v%d, v%d, v%d' % (KP + 2 * t, B_K + 4 * t, B_K + 4 * t + 1))
        L.append('v_cvt_pk_bf16_f32 v%d, v%d, v%d' % (KP + 2 * t + 1, B_K + 4 * t + 2, B_K + 4 * t + 3))
    for p in range(2):
        for k, t in enumerate([8] + [4 * p + b for b in range(4)]):
            L.append('v_cvt_pk_bf16_f32 v%d, v%d, v%d' % (LV[p] + 2 * k, B_V + 4 * t, B_V + 4 * t + 1))
            L.append('v_cvt_pk_bf16_f32 v%d, v%d, v%d' % (LV[p] + 2 * k + 1, B_V + 4 * t + 2, B_V + 4 * t + 3))
    weave(L, [([init_load(244, 245)], 0, 1), (wo[:6], 4, 8)])
    for t in range(8):
        b = t & 3; p = t >> 2
        prev = t - 1 if b > 0 else 8
        cm = B_CPREV if b > 0 else (B_CH0 if p == 0 else B_CH1)
        a('v_mfma_f32_16x16x16_bf16 %s, %s, %s, %s' % (vr(S + 8 * t, 4), vr(KP + 2 * prev, 2), vr(QP + 2 * t, 2), vr(cm, 4)))
        a('v_mfma_f32_16x16x16_bf16 %s, %s, %s, %s' % (vr(S + 8 * t + 4, 4), vr(KP + 2 * t, 2), vr(QP + 2 * t, 2), vr(B_CCUR, 4)))
    L = []
    for t in range(8):
        s = S + 8 * t
        L.append('v_max3_f32 v%d, v%d, v%d, v%d' % (MX + t, s, s + 1, s + 2))
        L.append('v_max3_f32 v%d, v%d, v%d, v%d' % (T + t, s + 3, s + 4, s + 5))
    for t in range(8):
        s = S + 8 * t
        L.append('v_max3_f32 v%d, v%d, v%d, v%d' % (MX + t, MX + t, s + 6, s + 7))
    for t in range(8):
        L.append('v_max_f32 v%d, v%d, v%d' % (MX + t, MX + t, T + t))
    weave(L, [(wo[6:9], 4, 8)])
    a('s_mov_b32 s52, 0x%x' % fbits(0.25 * LOG2E))
    a('s_mov_b32 s53, s52')
    def batch(m):
        A_, B_, C_, D_ = m, m + 1, m + 2, m + 3
        return ['v_permlane16_swap_b32 v%d, v%d' % (A_, B_),
                'v_permlane16_swap_b32 v%d, v%d' % (C_, D_),
                'v_max_f32 v%d, v%d, v%d' % (A_, A_, B_),
                'v_max_f32 v%d, v%d, v%d' % (C_, C_, D_),
                'v_permlane32_swap_b32 v%d, v%d' % (A_, C_),
                'v_max_f32 v%d, v%d, v%d' % (A_, A_, C_),
                'v_mul_f32 v%d, s52, v%d' % (A_, A_),
                'v_mov_b32 v%d, v%d' % (C_, A_),
                'v_permlane32_swap_b32 v%d, v%d' % (A_, C_),
                'v_mov_b32 v%d, v%d' % (B_, A_),
                'v_mov_b32 v%d, v%d' % (D_, C_),
                'v_permlane16_swap_b32 v%d, v%d' % (A_, B_),
                'v_permlane16_swap_b32 v%d, v%d' % (C_, D_)]
    b0 = batch(MX); b1 = batch(MX + 4)
    for x, y in zip(b0, b1):
        a(x); a(y)
    L = []
    for t in range(8):
        s = S + 8 * t
        mreg = MX + (t & ~1); sel = t & 1
        for q in range(4):
            L.append('v_pk_fma_f32 %s, %s, s[52:53], %s op_sel:[0,0,%d] op_sel_hi:[1,1,%d] neg_lo:[0,0,1] neg_hi:[0,0,1]' %
                     (vr(s + 2 * q, 2), vr(s + 2 * q, 2), vr(mreg, 2), sel, sel))
        for q in range(8):
            L.append('v_exp_f32 v%d, v%d' % (s + q, s + q))
        for q in range(4):
            L.append('v_cvt_pk_bf16_f32 v%d, v%d, v%d' % (P + 4 * t + q, s + 2 * q, s + 2 * q + 1))
    weave(L, [(wo[9:16], 4, 16)])
    for t in range(8):
        b = t & 3; p = t >> 2
        a('v_mfma_f32_16x16x32_bf16 %s, %s, %s, 0' % (vr(S + 8 * t, 4), vr(LV[p] + 2 * b, 4), vr(P + 4 * t, 4)))
        a('v_mfma_f32_16x16x32_bf16 %s, %s, %s, 0' % (vr(S + 8 * t + 4, 4), vr(B_ONES, 4), vr(P + 4 * t, 4)))
    a('s_lshl_b32 s52, s28, 2'); a('s_add_u32 s52, s52, s29'); a('s_lshl_b32 s52, s52, 10')
    a('v_lshlrev_b32 v16, 4, v1'); a('v_add_u32 v16, s52, v16')
    a('s_add_u32 s53, s27, 16'); a('s_lshl_b32 s53, s53, 17'); a('s_add_u32 s53, s53, 0x%x' % CH)
    for pr in range(4):
        for u in range(2):
            t = 2 * pr + u; s = S + 8 * t
            a('v_rcp_f32 v%d, v%d' % (s + 4, s + 4))
        for u in range(2):
            t = 2 * pr + u; s = S + 8 * t
            a('v_pk_mul_f32 %s, %s, %s op_sel_hi:[1,0]' % (vr(s, 2), vr(s, 2), vr(s + 4, 2)))
            a('v_pk_mul_f32 %s, %s, %s op_sel_hi:[1,0]' % (vr(s + 2, 2), vr(s + 2, 2), vr(s + 4, 2)))
            a('v_cvt_pk_bf16_f32 v%d, v%d, v%d' % (OP + 4 * pr + 2 * u, s, s + 1))
            a('v_cvt_pk_bf16_f32 v%d, v%d, v%d' % (OP + 4 * pr + 2 * u + 1, s + 2, s + 3))
        a('v_permlane16_swap_b32 v%d, v%d' % (OP + 4 * pr, OP + 4 * pr + 2))
        a('v_permlane16_swap_b32 v%d, v%d' % (OP + 4 * pr + 1, OP + 4 * pr + 3))
        a('s_add_u32 s54, s53, 0x%x' % (pr * 32768))
        a('buffer_store_dwordx4 %s, v16, %s, s54 offen sc1' % (vr(OP + 4 * pr, 4), srd(SRD_WS)))
    stamp('B_att')
    a('s_waitcnt vmcnt(%d)' % (4 + len(wo)))
    flag_check('initB', 'v244', S_DBG, NZERO_WG, 245)

A_F = [20, 36]
A_K, A_V, A_Q = 84, 116, 148
A_WO = 52
def a_xreg(ks, bb): return (ks * 4 + bb) * 4

def a_units(st):
    if st < 8: return [1, 2]
    return [0, 0]

def a_dma_w(st, vm):
    L = []
    slot = A_RING + (st % 5) * A_SLOT
    cb = lambda t='W%d' % st: vm.issue(t)
    for u, seg in enumerate(a_units(st)):
        L.append(('s_add_u32 m0, s71, 0x%x\nbuffer_load_dwordx4 v7, %s, s64 offen offset:%d lds' %
                  (slot + u * 8192 - seg * 1024, srd(SRD_W), seg * 1024), cb))
        t = 'buffer_load_dwordx4 v8, %s, s64 offen offset:%d lds' % (srd(SRD_W), (seg + 1) * 1024)
        if st >= 8 or u == 1: t += '\n' + adv_w(64)
        L.append((t, cb))
    return L

def a_dma_x(c, vm):
    cb = lambda t='x%d' % c: vm.issue(t)
    L = [('s_add_u32 m0, s72, 0x%x\nbuffer_load_dwordx4 v2, %s, s65 offen lds' % ((c % 4) * 16384, srd(SRD_X)), cb)]
    for i in range(1, 4):
        t = 'buffer_load_dwordx4 v%d, %s, s65 offen offset:%d lds' % (2 + i, srd(SRD_X), i * 1024)
        if i == 3: t += '\n' + adv_x(65)
        L.append((t, cb))
    return L

def a_xreads(c):
    L = []
    for kk in range(2):
        for bb in range(4):
            L.append('ds_read_b128 %s, v%d offset:%d' % (ar(a_xreg(2 * c + kk, bb), 4), 14 + kk, (c % 4) * 16384 + bb * 2048))
    return L

def a_reads(F, st, step):
    L = []
    sl = st % 5
    slot = A_RING + sl * A_SLOT
    for f in range(4):
        hh = f & 1; hi = f >> 1
        if st < 8: u, kk = hi, step
        else: u, kk = step, hi
        for jj in range(2):
            off = slot + u * 8192 + kk * 4096 + jj * 512
            if sl >= 3: v = 12 + hh; imm = off - 49152
            else: v = 10 + hh; imm = off
            assert 0 <= imm < 65536
            L.append('ds_read_b64_tr_b16 %s, v%d offset:%d' % (vr(F + 4 * f + 2 * jj, 2), v, imm))
    return L

def a_mfmas(F, st, step):
    L = []
    for f in range(4):
        hh = f & 1; hi = f >> 1
        for bb in range(4):
            w = vr(F + 4 * f, 4)
            if st < 8:
                ks = 2 * st + step
                x = ar(a_xreg(ks, bb), 4)
                acc = (A_K if hi == 0 else A_V) + (bb * 2 + hh) * 4
                first = (st == 0 and step == 0)
                c = (vr(A_EPS, 4) if hi == 0 else '0') if first else vr(acc, 4)
                L.append('v_mfma_f32_16x16x32_bf16 %s, %s, %s, %s' % (vr(acc, 4), x, w, c))
            else:
                cc = 2 * (st - 8) + step
                ks = 2 * cc + hi
                x = ar(a_xreg(ks, bb), 4)
                acc = A_Q + (bb * 2 + hh) * 4
                first = (st == 8 and step == 0 and hi == 0)
                c = vr(A_EPS, 4) if first else vr(acc, 4)
                L.append('v_mfma_f32_16x16x32_bf16 %s, %s, %s, %s' % (vr(acc, 4), w, x, c))
    return L
A_EPS = 56

def phi4(r, cm, tmp):
    L = []
    for q in range(2):
        L.append('v_pk_fma_f32 %s, %s, s[54:55], %s' % (vr(tmp + 2 * q, 2), vr(r + 2 * q, 2), vr(cm, 2)))
    for q in range(4):
        L.append('v_exp_f32_e64 v%d, v%d clamp' % (tmp + q, tmp + q))
    for q in range(4):
        L.append('v_max_f32 v%d, s58, v%d' % (r + q, r + q))
    for q in range(2):
        L.append('v_pk_add_f32 %s, %s, %s' % (vr(r + 2 * q, 2), vr(r + 2 * q, 2), vr(tmp + 2 * q, 2)))
    return L

def phi_consts(cm):
    a('s_mov_b32 s54, 0x%x' % fbits(LOG2E)); a('s_mov_b32 s55, s54')
    a('s_mov_b32 s58, 0x%x' % fbits(1e-6))
    a('v_mov_b32 v%d, 0x%x' % (cm, fbits(-1e-6 * LOG2E))); a('v_mov_b32 v%d, 0x%x' % (cm + 1, fbits(-1e-6 * LOG2E)))

def a_path():
    vm = VM()
    srd_const(SRD_X, 2048 * 1024); srd_const(SRD_W, 512 * 3072)
    a('s_lshl_b32 s71, s29, 11')
    a('s_lshl_b32 s72, s29, 12'); a('s_add_u32 s72, s72, 0x%x' % WO_BASE)
    rot_off('s57')
    a('s_lshl_b32 s65, s57, 7'); a('s_mul_i32 s64, s57, 0x30000')
    a('s_lshl_b32 s52, s27, 7'); a('s_lshl_b32 s53, s29, 5'); a('s_add_u32 s52, s52, s53')
    a('v_add_u32 v2, s52, v16')
    a('v_lshlrev_b32 v2, 10, v2')
    a('v_xor_b32 v19, v20, v18')
    a('v_lshl_add_u32 v2, v19, 4, v2')
    a('v_xor_b32 v3, 64, v2')
    a('v_add_u32 v4, %d, v2' % (16384 - 2048))
    a('v_add_u32 v5, %d, v3' % (24576 - 3072))
    a('v_add_u32 v3, %d, v3' % (8192 - 1024))
    a('s_waitcnt lgkmcnt(0)')
    srd_base(SRD_X, S_AX); srd_base(SRD_W, S_AW)
    if OPT['probe0']: stamp('stP0')
    for it in a_dma_x(0, vm) + a_dma_w(0, vm): em(it)
    zero_init()
    queue = [('x', 1), ('W', 1), ('x', 2), ('W', 2), ('x', 3), ('W', 3), ('W', 4)]
    for k in range(4, 8): queue += [('x', k), ('W', k + 1)]
    queue += [('W', k) for k in range(9, 12)] + [('o', g) for g in range(4)]
    def earliest(kind, k):
        if kind == 'x': return -1 if k < 4 else 2 * (k - 4) + 1
        if kind == 'W': return -1 if k < 5 else 2 * (k - 5) + 1
        return 15 + k
    def items(kind, k):
        if kind == 'x': return a_dma_x(k, vm)
        if kind == 'W': return a_dma_w(k, vm)
        return [(x, lambda: vm.issue('wo')) for x in wo_group(k, A_WO)]
    def take(step, cap):
        out = []; n = 0; blocked = set()
        for e in list(queue):
            if n >= cap: break
            if e[0] in blocked: continue
            if earliest(*e) <= step:
                out += items(*e); queue.remove(e); n += 1
            else: blocked.add(e[0])
        return out
    dm = take(-1, OPT['apre'] - 2)
    setup = wfrag_base_items()
    setup += ['s_and_b32 s62, s29, 1\ns_lshl_b32 s62, s62, 6', 'v_xor_b32 v10, s62, v9', 'v_xor_b32 v11, 32, v10',
              'v_add_u32 v12, 49152, v10', 'v_add_u32 v13, 49152, v11']
    setup += ['v_and_b32 v21, 15, v1', 'v_lshlrev_b32 v14, 7, v21', 'v_bfe_u32 v22, v1, 1, 3', 'v_xor_b32 v22, v22, v18',
              'v_lshl_add_u32 v14, v22, 4, v14',
              's_lshr_b32 s62, s29, 1\ns_lshl_b32 s62, s62, 13\ns_add_u32 s62, s62, 0x%x' % WO_BASE,
              'v_add_u32 v14, s62, v14', 'v_xor_b32 v15, 64, v14']
    setup += ['v_mov_b32 v%d, 0x%x' % (A_EPS + q, fbits(1e-6)) for q in range(4)]
    setup += wo_voff_items(A_WO, 180, 62)
    step = len(setup) / float(len(dm) + 1)
    weave(setup, [(dm, 0, step)])
    make_srd(SRD_O, S_AO, 512 * 1024)
    stamp('A_issued')
    zero_signal(len(dm))
    vm.wait('W0')
    a('s_barrier')
    stamp('A_first')
    for it in a_xreads(0) + a_reads(A_F[0], 0, 0): a(it)
    a('s_waitcnt lgkmcnt(0)')
    for st in range(12):
        cap = OPT['acap'] if st < 3 else (2 if st < 4 else 1)
        d0 = take(2 * st, cap)
        if st == 5: d0 += [(init_load(244, 245), lambda: vm.issue('init'))]
        weave(a_mfmas(A_F[0], st, 0), [(a_reads(A_F[1], st, 1), 0, 1), (d0, 0, 15.0 / max(len(d0), 1))])
        a('s_waitcnt lgkmcnt(0)')
        if st + 1 <= 11: vm.wait_all_of(['W%d' % (st + 1), 'x%d' % (st + 1)])
        if st == 10: vm.wait('atom')
        a('s_barrier')
        stamp('stA%d' % st) if st < (8 if not OPT['probe0'] else 6) and not OPT['probe1'] else None
        if st == 10:
            a('s_cmp_eq_u32 s29, 0')
            a('s_cbranch_scc0 L_A_nosig16')
            a('s_lshl_b32 s52, s28, 8')
            a('v_mov_b32 v180, s52'); a('v_mov_b32 v181, 1')
            a('s_mov_b64 exec, 1')
            a('global_atomic_add v180, v181, s[%d:%d] sc1' % (S_WS, S_WS + 1))
            a('s_mov_b64 exec, -1')
            a.label('L_A_nosig16')
        d1 = take(2 * st + 1, 2 if st < 4 else 1)
        if st == 11 and OPT['asyncpoll']:
            d1 += [('s_lshl_b32 s52, s28, 8\nv_mov_b32 v182, s52\nglobal_load_dword v183, v182, s[%d:%d] sc1' % (S_WS, S_WS + 1), lambda: vm.issue('poll'))]
        rd = []
        if st + 1 <= 7: rd += a_xreads(st + 1)
        if st + 1 <= 11: rd += a_reads(A_F[0], st + 1, 0)
        weave(a_mfmas(A_F[1], st, 1), [(rd, 0, 1), (d1, 0, 15.0 / max(len(d1), 1))])
        a('s_waitcnt lgkmcnt(0)')
        if st == 7:
            stamp('A_pass1')
            a_epi_k(vm)
            stamp('A_epik')
    assert not queue, queue
    stamp('A_pass2')
    a_epi_q(vm)
    a('s_lshl_b32 s52, s30, 7'); a('s_lshl_b32 s53, s29, 5'); a('s_add_u32 s52, s52, s53')
    a('s_lshl_b32 s74, s52, 11')
    a('s_mov_b32 s75, 11')
    publish_signal(0)
    a('s_branch L_P2')

def a_epi_k(vm):
    KP, VP = 184, 200
    TMP = 216; CM = 220; ONES = 224; KVR = 228; ZR = 246
    phi_consts(CM)
    for q in range(4): a('v_mov_b32 v%d, 0x3f803f80' % (ONES + q))
    for hh in range(2):
        for bb in range(4):
            r = A_K + (bb * 2 + hh) * 4
            t = TMP if (bb & 1) == 0 else 228
            for it in phi4(r, CM, t): a(it)
            a('v_cvt_pk_bf16_f32 v%d, v%d, v%d' % (KP + 8 * hh + 2 * bb, r, r + 1))
            a('v_cvt_pk_bf16_f32 v%d, v%d, v%d' % (KP + 8 * hh + 2 * bb + 1, r + 2, r + 3))
            r = A_V + (bb * 2 + hh) * 4
            a('v_cvt_pk_bf16_f32 v%d, v%d, v%d' % (VP + 8 * hh + 2 * bb, r, r + 1))
            a('v_cvt_pk_bf16_f32 v%d, v%d, v%d' % (VP + 8 * hh + 2 * bb + 1, r + 2, r + 3))
            if bb & 1:
                o = 4 * (bb >> 1)
                ckv = vr(A_V + 4 * hh, 4) if bb == 3 else '0'; cz = vr(A_K + 4 * hh, 4) if bb == 3 else '0'
                a('v_mfma_f32_16x16x32_bf16 %s, %s, %s, %s' % (vr(A_V + 4 * hh, 4), vr(VP + 8 * hh + o, 4), vr(KP + 8 * hh + o, 4), ckv))
                a('v_mfma_f32_16x16x32_bf16 %s, %s, %s, %s' % (vr(A_K + 4 * hh, 4), vr(ONES, 4), vr(KP + 8 * hh + o, 4), cz))
    a('s_lshr_b32 s52, s29, 1'); a('s_lshl_b32 s52, s52, 2'); a('s_and_b32 s53, s29, 1'); a('s_lshl_b32 s53, s53, 1'); a('s_add_u32 s52, s52, s53')
    a('v_lshlrev_b32 v%d, 4, v1' % TMP)
    a('s_lshl_b32 s53, s52, 10'); a('s_add_u32 s53, s53, %d' % A_SCR)
    a('v_add_u32 v%d, s53, v%d' % (TMP + 1, TMP))
    a('v_lshlrev_b32 v%d, 2, v1' % (TMP + 2))
    a('s_lshl_b32 s53, s52, 8'); a('s_add_u32 s53, s53, %d' % A_ZSCR)
    a('v_add_u32 v%d, s53, v%d' % (TMP + 3, TMP + 2))
    for hh in range(2):
        a('ds_write_b128 v%d, %s offset:%d' % (TMP + 1, vr(A_V + 4 * hh, 4), hh * 1024))
        a('ds_write_b32 v%d, v%d offset:%d' % (TMP + 3, A_K + 4 * hh, hh * 256))
    a('s_lshl_b32 s52, s29, 10'); a('s_add_u32 s52, s52, %d' % A_SCR)
    a('v_add_u32 v%d, s52, v%d' % (TMP, TMP))
    a('s_lshl_b32 s52, s29, 8'); a('s_add_u32 s52, s52, %d' % A_ZSCR)
    a('v_add_u32 v%d, s52, v%d' % (TMP + 2, TMP + 2))
    a('s_waitcnt lgkmcnt(0)')
    a('s_barrier')
    for rh in range(2):
        a('ds_read_b128 %s, v%d offset:%d' % (vr(KVR + 4 * rh, 4), TMP, rh * 4096))
        a('ds_read_b32 v%d, v%d offset:%d' % (ZR + rh, TMP + 2, rh * 1024))
    vm.wait('init')
    flag_check('initA', 'v244', S_DBG, NZERO_WG, 245)
    a('v_and_b32 v%d, 15, v1' % TMP); a('v_lshlrev_b32 v%d, 2, v%d' % (TMP, TMP))
    a('v_lshrrev_b32 v%d, 4, v1' % (TMP + 1))
    a('v_lshl_add_u32 v%d, v%d, 8, v%d' % (TMP + 1, TMP + 1, TMP))
    a('s_lshl_b32 s52, s28, 2'); a('s_add_u32 s52, s52, s29'); a('s_mul_i32 s52, s52, %d' % KVS); a('s_add_u32 s52, s52, 0x%x' % KV)
    a('s_waitcnt lgkmcnt(0)')
    for q in range(4):
        a('v_add_f32 v%d, v%d, v%d' % (KVR + q, KVR + q, KVR + 4 + q))
    a('v_add_f32 v%d, v%d, v%d' % (ZR, ZR, ZR + 1))
    for q in range(4):
        a('buffer_atomic_add_f32 v%d, v%d, %s, s52 offen offset:%d' % (KVR + q, TMP + 1, srd(SRD_WS), q * 64)); vm.issue('atom')
    a('s_mov_b64 exec, 0xffff')
    a('buffer_atomic_add_f32 v%d, v%d, %s, s52 offen offset:1024' % (ZR, TMP, srd(SRD_WS))); vm.issue('atom')
    a('s_mov_b64 exec, -1')

def a_epi_q(vm):
    QP = 20; TMP = 216; CM = 220; KZ = 36; AOP = 68; D1 = 84; OP = 184
    def kv_dma():
        a('v_lshlrev_b32 v18, 4, v1')
        a('s_lshl_b32 s52, s28, 2'); a('s_mul_i32 s52, s52, %d' % KVS); a('s_add_u32 s52, s52, 0x%x' % KV)
        for h in range(4):
            a('s_mov_b32 m0, %d' % (A_KVL + h * KVS))
            a('buffer_load_dwordx4 v18, %s, s52 offen sc1 lds' % srd(SRD_WS))
            a('s_mov_b64 exec, 0xf')
            a('s_add_u32 s53, s52, 1024')
            a('s_mov_b32 m0, %d' % (A_KVL + h * KVS + 1024))
            a('buffer_load_dwordx4 v18, %s, s53 offen sc1 lds' % srd(SRD_WS))
            a('s_mov_b64 exec, -1')
            if h < 3: a('s_add_u32 s52, s52, %d' % KVS)
    a('s_cmp_eq_u32 s29, 0')
    a('s_cbranch_scc0 L_A_nopoll')
    if OPT['asyncpoll']:
        vm.wait('poll')
        flag_check('cnt16', 'v182', S_WS, 16, 183)
    else:
        a('s_lshl_b32 s54, s28, 8')
        a('v_mov_b32 v182, s54')
        spin_wait('v182', S_WS, 16, 'cnt16', 183)
    kv_dma()
    a.label('L_A_nopoll')
    stamp('A_sync16')
    phi_consts(CM)
    for pr in range(2):
        for hh in range(2):
            q0 = QP + (pr * 2 + hh) * 4
            for b in range(2):
                r = A_Q + ((2 * pr + b) * 2 + hh) * 4
                t = TMP if b == 0 else 228
                for it in phi4(r, CM, t): a(it)
                a('v_cvt_pk_bf16_f32 v%d, v%d, v%d' % (q0 + 2 * b, r, r + 1))
                a('v_cvt_pk_bf16_f32 v%d, v%d, v%d' % (q0 + 2 * b + 1, r + 2, r + 3))
            a('v_permlane16_swap_b32 v%d, v%d' % (q0, q0 + 2))
            a('v_permlane16_swap_b32 v%d, v%d' % (q0 + 1, q0 + 3))
    a('v_and_b32 v16, 3, v1')
    a('v_bfe_u32 v17, v1, 3, 1')
    a('v_lshl_add_u32 v16, v17, 2, v16')
    a('v_bfe_u32 v17, v1, 2, 1')
    a('v_lshl_add_u32 v16, v17, 3, v16')
    a('v_bfe_u32 v17, v1, 4, 1')
    a('v_cmp_eq_u32 vcc, 1, v17')
    a('v_cndmask_b32_e64 v16, v16, 16, vcc')
    a('v_lshlrev_b32 v16, 6, v16')
    a('v_lshrrev_b32 v17, 5, v1')
    a('v_lshl_add_u32 v19, v17, 5, v16')
    a('s_and_b32 s52, s29, 1'); a('s_mul_i32 s53, s52, %d' % (2 * KVS)); a('s_add_u32 s53, s53, %d' % A_KVL)
    a('v_add_u32 v19, s53, v19')
    a('s_lshl_b32 s53, s28, 2'); a('s_lshl_b32 s52, s52, 1'); a('s_add_u32 s52, s52, s53'); a('s_lshl_b32 s52, s52, 10')
    a('v_lshlrev_b32 v16, 4, v1'); a('v_add_u32 v16, s52, v16')
    a('s_lshl_b32 s53, s27, 17'); a('s_lshr_b32 s54, s29, 1'); a('s_lshl_b32 s54, s54, 16'); a('s_add_u32 s53, s53, s54'); a('s_add_u32 s53, s53, 0x%x' % CH)
    stamp('A_epiq')
    a('s_waitcnt vmcnt(0)')
    a('s_barrier')
    for hh in range(2):
        a('ds_read_b128 %s, v19 offset:%d' % (vr(KZ + 8 * hh, 4), hh * KVS))
        a('ds_read_b128 %s, v19 offset:%d' % (vr(KZ + 8 * hh + 4, 4), hh * KVS + 16))
    for hh in range(2):
        a('s_waitcnt lgkmcnt(%d)' % (2 - 2 * hh))
        for q in range(4):
            a('v_cvt_pk_bf16_f32 v%d, v%d, v%d' % (AOP + 4 * hh + q, KZ + 8 * hh + 2 * q, KZ + 8 * hh + 2 * q + 1))
        for pr in range(2):
            a('v_mfma_f32_32x32x16_bf16 %s, %s, %s, 0' % (vr(D1 + 16 * (pr * 2 + hh), 16), vr(AOP + 4 * hh, 4), vr(QP + 4 * (pr * 2 + hh), 4)))
    a('s_mov_b32 s58, 0x%x' % fbits(1e-6))
    for hh in range(2):
        for pr in range(2):
            i = pr * 2 + hh
            d = D1 + 16 * i
            a('v_add_f32 v%d, s58, v%d' % (d + 8, d + 8))
            a('v_rcp_f32 v%d, v%d' % (d + 8, d + 8))
            for q in range(4):
                a('v_pk_mul_f32 %s, %s, %s op_sel_hi:[1,0]' % (vr(d + 2 * q, 2), vr(d + 2 * q, 2), vr(d + 8, 2)))
            for q in range(4):
                a('v_cvt_pk_bf16_f32 v%d, v%d, v%d' % (OP + 4 * i + q, d + 2 * q, d + 2 * q + 1))
            if pr == 1 and hh == 0: pass
            a('s_add_u32 s54, s53, %d' % (pr * 32768))
            a('buffer_store_dwordx4 %s, v16, %s, s54 offen offset:%d sc1' % (vr(OP + 4 * i, 4), srd(SRD_WS), hh * 1024))
    stamp('A_o')

def phase2():
    a.label('L_P2')
    make_srd(SRD_OUT, S_OUT, 2048 * 2048)
    a('s_lshl_b32 s52, s26, 4'); a('s_add_u32 s52, s52, s30'); a('s_lshl_b32 s52, s52, 2'); a('s_add_u32 s52, s52, s29')
    a('s_lshl_b32 s52, s52, 15'); a('s_add_u32 s52, s52, 0x%x' % CH)
    a('v_lshlrev_b32 v2, 4, v1')
    a('v_lshrrev_b32 v3, 5, v1')
    a('v_lshlrev_b32 v3, 10, v3')
    a('v_bfe_u32 v4, v1, 2, 2')
    a('v_lshl_add_u32 v3, v4, 7, v3')
    a('v_bfe_u32 v4, v1, 4, 1')
    a('v_lshl_add_u32 v3, v4, 5, v3')
    a('v_and_b32 v4, 3, v1')
    a('v_lshl_add_u32 v3, v4, 3, v3')
    a('v_bfe_u32 v4, v1, 3, 1')
    a('v_lshlrev_b32 v4, 6, v4')
    a('v_xor_b32 v3, v3, v4')
    a('v_add_u32 v3, %d, v3' % WO_BASE)
    a('v_xor_b32 v4, 64, v3')
    WF = [20, 28, 36]; ACC = 48
    def reads(h, F):
        return ['ds_read_b64_tr_b16 %s, v%d offset:%d' % (vr(F + 4 * tl + 2 * jj, 2), 3 + tl, h * 2048 + jj * 512)
                for tl in range(2) for jj in range(2)]
    for it in reads(0, WF[0]) + reads(1, WF[1]): a(it)
    a('s_barrier')
    stamp('P2_go')
    def load(h):
        t = ''
        if h % 4 == 0 and h: t = 's_add_u32 s52, s52, 4096\n'
        return t + 'buffer_load_dwordx4 %s, v2, %s, s52 offen offset:%d sc1' % (ar(4 * h, 4), srd(SRD_WS), (h % 4) * 1024)
    PRE = OPT['p2pre']
    for h in range(PRE): a(load(h))
    issued = PRE
    for h in range(32):
        F = WF[h % 3]
        nxt = reads(h + 2, WF[(h + 2) % 3]) if h + 2 < 32 else []
        for it in nxt: a(it)
        outstanding = (8 if h + 2 < 32 else (4 if h + 1 < 32 else 0))
        a('s_waitcnt vmcnt(%d) lgkmcnt(%d)' % (issued - 1 - h, outstanding))
        for tl in range(2):
            c = vr(ACC + 16 * tl, 16) if h else '0'
            a('v_mfma_f32_32x32x16_bf16 %s, %s, %s, %s' % (vr(ACC + 16 * tl, 16), vr(F + 4 * tl, 4), ar(4 * h, 4), c))
            if tl == 0 and issued < 32:
                a(load(issued)); issued += 1
    stamp('P2_gemm')
    PK = 84
    a('v_and_b32 v5, 31, v1')
    a('v_and_b32 v6, 7, v5')
    a('v_lshlrev_b32 v7, 7, v5')
    a('s_lshl_b32 s52, s29, 12')
    a('v_add_u32 v7, s52, v7')
    a('v_lshrrev_b32 v8, 5, v1')
    a('v_lshl_add_u32 v7, v8, 3, v7')
    for g in range(8):
        a('v_xor_b32 v9, %d, v6' % g)
        a('v_lshl_add_u32 v%d, v9, 4, v7' % (116 + g))
    a('v_lshrrev_b32 v5, 3, v1')
    a('v_and_b32 v6, 7, v1')
    a('v_xor_b32 v8, v5, v6')
    a('v_lshlrev_b32 v8, 4, v8')
    a('v_lshl_add_u32 v8, v5, 7, v8')
    a('v_add_u32 v8, s52, v8')
    a('v_lshlrev_b32 v9, s75, v5')
    a('v_lshl_add_u32 v9, v6, 4, v9')
    a('s_lshl_b32 s53, s31, 7'); a('s_add_u32 s74, s74, s53')
    a('s_lshl_b32 s54, 8, s75')
    for tl in range(2):
        for q in range(4):
            d = ACC + 16 * tl + 4 * q; p = PK + 2 * (tl * 4 + q)
            a('v_cvt_pk_bf16_f32 v%d, v%d, v%d' % (p, d, d + 1))
            a('v_cvt_pk_bf16_f32 v%d, v%d, v%d' % (p + 1, d + 2, d + 3))
            a('ds_write_b64 v%d, %s' % (116 + tl * 4 + q, vr(p, 2)))
    a('s_waitcnt lgkmcnt(0)')
    for it in range(4):
        a('ds_read_b128 %s, v8 offset:%d' % (vr(100 + 4 * it, 4), it * 1024))
    for it in range(4):
        a('s_waitcnt lgkmcnt(%d)' % (3 - it))
        a('buffer_store_dwordx4 %s, v9, %s, s74 offen' % (vr(100 + 4 * it, 4), srd(SRD_OUT)))
        if it < 3: a('s_add_u32 s74, s74, s54')
    if OPT['stamps']:
        a('s_waitcnt vmcnt(0)')
        stamp('end')
        a('s_waitcnt lgkmcnt(0)')
        a('s_lshl_b32 s52, s2, 2'); a('s_add_u32 s52, s52, s29'); a('s_lshl_b32 s52, s52, 7'); a('s_add_u32 s52, s52, 0x%x' % STAMP)
        a('v_lshlrev_b32 v2, 2, v1')
        a('v_mov_b32 v3, 0')
        for i in range(13):
            a('v_cmp_eq_u32 vcc, %d, v1' % i)
            a('v_mov_b32 v4, s%d' % (76 + 2 * i))
            a('v_cndmask_b32 v3, v3, v4, vcc')
        a('s_mov_b64 exec, 0x1fff')
        a('buffer_store_dword v3, v2, %s, s52 offen' % srd(SRD_WS))
    a('s_endpgm')

hdr = open('concat_heads__linear_attn_block__sliding_local_dilated__prompt.s.ref').read().split('\n')
for l in hdr:
    if l.startswith('; @launch'): break
    a(l)
if OPT['empty2']:
    a('; @launch kernel=%s grid=(256,1,1) block=(256,1,1) lds=%d' % (KNAME, LDS_BYTES))
    for i in range(OPT['empty2']):
        a('; @launch kernel=empty_kernel grid=(256,1,1) block=(256,1,1) lds=0')
else:
    a('; @launch grid=(256,1,1) block=(256,1,1) lds=%d' % LDS_BYTES)
a('.amdgcn_target "amdgcn-amd-amdhsa--gfx950"')
kernel_begin(a, KNAME)
body_start = len(a.lines)
prologue()
base = NSTAMP[0]
a_path()
NSTAMP[0] = base
b_path()
NSTAMP[0] = 10
phase2()
body = fix_hazards(a.lines[body_start:], verbose=True)
a.lines = a.lines[:body_start] + body
if OPT['empty2']:
    kernel_begin(a, 'empty_kernel')
    a('s_endpgm')
kernel_desc(a, KNAME, 512, 102, 256)
if OPT['empty2']:
    kernel_desc(a, 'empty_kernel', 64, 32)
open(OPT['out'], 'w').write(a.text())
print('lines', len(a.lines))
```
